```python
import torch

def _softmax(x, axis=-1):
    return torch.softmax(x, dim=axis)
def _gelu(x):
    return torch.nn.functional.gelu(x, approximate="tanh")
def _silu(x):
    return torch.nn.functional.silu(x)
def _sigmoid(x):
    return torch.sigmoid(x)
def _layernorm(x, axis=-1, eps=1e-5):
    m = x.mean(dim=axis, keepdim=True)
    v = x.var(dim=axis, keepdim=True, unbiased=False)
    return (x - m) / torch.sqrt(v + eps)
def _scatter_add(tgt, idx, src, axis=0):
    return tgt.clone().index_add_(axis, idx, src)
def _segment_sum(src, seg, n):
    out = torch.zeros((n,) + src.shape[1:], dtype=src.dtype)
    return out.index_add_(0, seg, src)
def _pad(x, pw):
    flat = tuple(v for pair in reversed(pw) for v in pair)
    return torch.nn.functional.pad(x, flat)

kernel_name = 'gated_mix__compressed_kv_cla__geglu_ffn__prompt'

def setup_inputs():

    _w = (lambda a: (lambda t: t.to(torch.bfloat16) if t.is_floating_point() else t)(torch.as_tensor(a)))
    def _A_setup():
        B, H, Sq, Sk, D, M = 1, 16, 2048, 2048, 256, 448
        Dc = 4 * D
        return {
            "x": _w((lambda *s: torch.randn(*s, dtype=torch.bfloat16) * 0.05)(B, Sq, M)),
            "c_kv": _w((lambda *s: torch.randn(*s, dtype=torch.bfloat16) * 0.8)(B, Sk, Dc)),
            "w_q": _w((lambda *s: torch.randn(*s, dtype=torch.bfloat16) * 6.4)(M, H, D) * (M ** -0.5)),
            "w_uk": _w((lambda *s: torch.randn(*s, dtype=torch.bfloat16) * 6.4)(Dc, H, D) * (Dc ** -0.5)),
            "w_uv": _w((lambda *s: torch.randn(*s, dtype=torch.bfloat16) * 0.8)(Dc, H, D) * (Dc ** -0.5)),
            "w_o": _w((lambda *s: torch.randn(*s, dtype=torch.bfloat16) * 0.8)(H, D, M) * ((H * D) ** -0.5)),
        }
    _A_in = _A_setup()

    def _B_setup():
        B, S, D, F = 1, 2048, 448, 1792
        return {
            "x": _w((lambda *s: torch.randn(*s, dtype=torch.bfloat16) * 0.05)(B, S, D)),
            "w_gate": _w((lambda *s: torch.randn(*s, dtype=torch.bfloat16) * 0.2)(D, F)),
            "w_up": _w((lambda *s: torch.randn(*s, dtype=torch.bfloat16) * 0.2)(D, F)),
            "w_down": _w((lambda *s: torch.randn(*s, dtype=torch.bfloat16) * 0.2)(F, D)),
        }
    _B_in = _B_setup()

    return {
        "A_x": _A_in["x"],
        "A_c_kv": _A_in["c_kv"],
        "A_w_q": _A_in["w_q"],
        "A_w_uk": _A_in["w_uk"],
        "A_w_uv": _A_in["w_uv"],
        "A_w_o": _A_in["w_o"],
        "B_x": _B_in["x"],
        "B_w_gate": _B_in["w_gate"],
        "B_w_up": _B_in["w_up"],
        "B_w_down": _B_in["w_down"],
        "gate_w": _w((lambda *s: torch.randn(*s, dtype=torch.bfloat16) * 0.05)(448) * 16.0),
    }

def reference(A_x, A_c_kv, A_w_q, A_w_uk, A_w_uv, A_w_o, B_x, B_w_gate, B_w_up, B_w_down, gate_w):
    def _A_ref(x, c_kv, w_q, w_uk, w_uv, w_o):
        B, Sq, M = x.shape[0], x.shape[1], x.shape[2]
        Sk = c_kv.shape[1]
        H, D = w_q.shape[1], w_q.shape[2]
        q = torch.einsum("bqm,mhd->bhqd", x, w_q)
        k = torch.einsum("bkc,chd->bhkd", c_kv, w_uk)
        v = torch.einsum("bkc,chd->bhkd", c_kv, w_uv)
        scores = torch.einsum("bhqd,bhkd->bhqk", q, k) * (D ** -0.5)
        off = Sk - Sq
        qi = torch.arange(Sq)[:, None]
        kj = torch.arange(Sk)[None, :]
        cmask = kj <= (qi + off)
        scores = torch.where(cmask[None, None], scores, -1e9)
        p = _softmax(scores, axis=-1)
        ctx = torch.einsum("bhqk,bhkd->bhqd", p, v)
        return torch.einsum("bhqd,hdm->bqm", ctx, w_o)

    def _B_ref(x, w_gate, w_up, w_down):
        return (_gelu(x @ w_gate) * (x @ w_up)) @ w_down

    x = A_x
    g = _sigmoid((x * gate_w).sum(-1, keepdims=True))
    a = _A_ref(x, A_c_kv, A_w_q, A_w_uk, A_w_uv, A_w_o)
    b = _B_ref(x, B_w_gate, B_w_up, B_w_down)
    return g * a + (1 - g) * b
```

```python
S = 2048; M = 448; DC = 1024; H = 16; D = 256; F = 1792
KA = dict(x=0, c=8, wq=16, wuk=24, wuv=32, wo=40, bx=48, wg=56, wu=64, wd=72, gw=80, out=88, dbg=96, ws=104)
SZ = dict(x=S * M * 2, c=S * DC * 2, wq=M * H * D * 2, wuk=DC * H * D * 2, wuv=DC * H * D * 2, wo=H * D * M * 2,
          wg=M * F * 2, wu=M * F * 2, wd=F * M * 2, gw=M * 2, out=S * M * 2, ws=268435456)
WS_KV = 0
WS_Q = WS_KV + H * 64 * 32 * 1024
WS_H = WS_Q + H * 64 * 16 * 1024
WS_PO = WS_H + 64 * H * 8 * 1024
WS_PM = WS_PO + 64 * 28 * H * 1024
WS_G = WS_PM + H * 8 * 4 * 17 * 1024
WS_FL = WS_G + S * 4
WS_END = WS_FL + H * 8 * 128
LOG2E = 1.4426950408889634
import struct
def f2u(x):
    return struct.unpack('<I', struct.pack('<f', x))[0]
def hexf(x):
    return '0x%08x' % f2u(x)
```

```python
import re

COST = {'mfma': 8, 'valu': 4, 'trans': 8, 'salu': 4, 'ds': 4, 'vmem': 4, 'wait': 4, 'bar': 4, 'nop': 4, 'br': 4, 'label': 0}

def kind_of(text):
    m = text.split()[0]
    if text.endswith(':'): return 'label'
    if m.startswith('v_mfma'): return 'mfma'
    if m in ('v_exp_f32', 'v_rcp_f32', 'v_log_f32', 'v_rsq_f32', 'v_sqrt_f32'): return 'trans'
    if m.startswith('v_'): return 'valu'
    if m.startswith('ds_'): return 'ds'
    if m.startswith('buffer_') or m.startswith('global_'): return 'vmem'
    if m == 's_waitcnt': return 'wait'
    if m == 's_barrier': return 'bar'
    if m == 's_nop': return 'nop'
    if m.startswith('s_cbranch') or m in ('s_branch', 's_endpgm', 's_setpc_b64', 's_swappc_b64'): return 'br'
    return 'salu'

class I:
    __slots__ = ('t', 'k', 'tag', 'need', 'cost')
    def __init__(self, t, tag=None, need=(), cost=None):
        self.t = t.strip(); self.k = kind_of(self.t); self.tag = tag; self.need = tuple(need)
        if cost is None:
            cost = COST[self.k]
            if self.k == 'nop': cost = 4 * (int(self.t.split()[1]) + 1)
        self.cost = cost

class Stream:
    def __init__(self, name, prio=0, elastic=False):
        self.name = name; self.items = []; self.prio = prio; self.elastic = elastic
    def add(self, ins, e=0, d=10 ** 9):
        if isinstance(ins, str): ins = I(ins)
        self.items.append((e, d, ins)); return ins

def pack(mfmas, streams, budget=8, tail=True):
    out = []
    pos = [0] * len(streams)
    n = len(mfmas)
    def effective_deadline(si):
        st = streams[si]; p = pos[si]
        return min(d for (_, d, _) in st.items[p:p + 64])
    def fill(g, bud):
        used = 0
        while True:
            best = None
            for si, st in enumerate(streams):
                if pos[si] >= len(st.items): continue
                e, d, ins = st.items[pos[si]]
                if e > g: continue
                dl = effective_deadline(si)
                forced = dl <= g
                if not forced and used + ins.cost > bud: continue
                key = (0 if forced else 1, dl, -st.prio, si)
                if best is None or key < best[0]: best = (key, si)
            if best is None: break
            si = best[1]
            ins = streams[si].items[pos[si]][2]
            out.append(ins); used += ins.cost; pos[si] += 1
        return used
    fill(-1, 0)
    for g, m in enumerate(mfmas):
        if isinstance(m, list):
            out.extend(m)
        else:
            out.append(m)
        fill(g, budget)
    for si, st in enumerate(streams):
        if st.elastic:
            st.items = [(-1, d - n if d < 10 ** 8 else d, ins) for (_, d, ins) in st.items[pos[si]:]]
        else:
            while pos[si] < len(st.items):
                out.append(st.items[pos[si]][2]); pos[si] += 1
            st.items = []
    return out

def insert_lgkm_waits(seq, pending=()):
    q = list(pending)
    out = []
    for ins in seq:
        if ins.need:
            idx = -1
            for t in ins.need:
                if t in q: idx = max(idx, len(q) - 1 - q[::-1].index(t))
            if idx >= 0:
                nleft = len(q) - 1 - idx
                n = min(nleft, 15)
                out.append(I('s_waitcnt lgkmcnt(%d)' % n))
                q = q[len(q) - n:] if n else []
        if ins.k == 'wait':
            m = re.search(r'lgkmcnt\((\d+)\)', ins.t)
            if m:
                n = int(m.group(1))
                q = q[len(q) - n:] if n and len(q) > n else (q if n and len(q) <= n else [])
        if ins.k == 'ds':
            q.append(ins.tag if ins.tag is not None else ('anon', id(ins)))
        out.append(ins)
    return out, q

_reg = re.compile(r'\b([vas])\[(\d+):(\d+)\]|\b([vas])(\d+)\b')
def regs_of(op):
    r = set()
    for m in _reg.finditer(op):
        if m.group(1):
            for i in range(int(m.group(2)), int(m.group(3)) + 1): r.add((m.group(1), i))
        else:
            r.add((m.group(4), int(m.group(5))))
    if re.search(r'\bvcc\b', op): r.add(('s', 'vcc'))
    if re.search(r'\bm0\b', op): r.add(('s', 'm0'))
    if re.search(r'\bexec\b', op): r.add(('s', 'exec'))
    return r

def split_ops(text):
    parts = text.split(None, 1)
    if len(parts) == 1: return parts[0], []
    ops = [o.strip() for o in parts[1].split(',')]
    return parts[0], ops

def rw(ins):
    m, ops = split_ops(ins.t)
    k = ins.k
    w, r, c = set(), set(), set()
    if k == 'mfma':
        w = regs_of(ops[0]); r = regs_of(ops[1]) | regs_of(ops[2]); c = regs_of(ops[3])
    elif k in ('valu', 'trans'):
        if m.startswith('v_cmp'):
            w = regs_of(ops[0]); r = set().union(*[regs_of(o) for o in ops[1:]])
        elif m.startswith('v_permlane') and 'swap' in m:
            w = regs_of(ops[0]) | regs_of(ops[1]); r = set(w)
        else:
            w = regs_of(ops[0]); r = set().union(*[regs_of(o) for o in ops[1:]]) if len(ops) > 1 else set()
            if m.startswith('v_fmac') or m.startswith('v_pk_fmac') or m.startswith('v_dot2c'): r |= w
            if m.startswith('v_cndmask') and len(ops) == 3: r.add(('s', 'vcc'))
            if m.startswith('v_add_co') or m.startswith('v_addc_co'):
                w |= regs_of(ops[1])
    elif k == 'ds':
        if 'read' in m or 'permute' in m or 'swizzle' in m:
            w = regs_of(ops[0]); r = set().union(*[regs_of(o.split()[0]) for o in ops[1:]])
        else:
            r = set().union(*[regs_of(o.split()[0]) for o in ops])
    elif k == 'vmem':
        if ' lds' in ins.t:
            r = set().union(*[regs_of(o.split()[0]) for o in ops]); r.add(('s', 'm0'))
        elif 'load' in m:
            w = regs_of(ops[0]); r = set().union(*[regs_of(o.split()[0]) for o in ops[1:]])
        else:
            r = set().union(*[regs_of(o.split()[0]) for o in ops])
    elif k == 'salu':
        if m.startswith('s_cmp'):
            r = set().union(*[regs_of(o) for o in ops])
        elif ops:
            w = regs_of(ops[0]); r = set().union(*[regs_of(o) for o in ops[1:]]) if len(ops) > 1 else set()
    return w, r, c

def states(ins):
    if ins.k == 'label': return 0
    if ins.k == 'nop': return int(ins.t.split()[1]) + 1
    return 1

def lint(seq, name=''):
    errs = []
    info = [rw(i) for i in seq]
    n = len(seq)
    for a in range(n):
        A = seq[a]; wa, ra, ca = info[a]
        if A.k == 'label': continue
        dist = 0
        for b in range(a + 1, min(n, a + 40)):
            B = seq[b]; wb, rb, cb = info[b]
            if B.k == 'label': continue
            need = 0; why = ''
            mA = A.t.split()[0]; mB = B.t.split()[0]
            passesA = 4 if '16x16x32' in mA else 8
            vw = {x for x in wa if x[0] in 'va'}
            sw = {x for x in wa if x[0] == 's'}
            if A.k in ('valu', 'trans'):
                if B.k == 'mfma' and vw & (rb | cb): need, why = 2, 'VALU->MFMA operand'
                if mB.startswith('v_permlane') and vw & rb: need, why = max(need, 2), 'VALU->permlane'
                if mB.startswith('v_readfirstlane') or mB.startswith('v_readlane'):
                    if vw & rb: need, why = max(need, 1), 'VALU->readlane'
                if B.k in ('valu', 'trans') and 'dpp' in B.t or (B.k in ('valu', 'trans') and ('row_' in B.t or 'quad_perm' in B.t)):
                    if vw & rb: need, why = max(need, 2), 'VALU->DPP'
                if sw & rb:
                    if B.k == 'vmem': need, why = max(need, 5), 'VALU sgpr->VMEM'
                    elif B.k in ('valu', 'trans'): need, why = max(need, 2), 'VALU sgpr->VALU'
                if A.k == 'trans' and B.k == 'valu' and vw & rb: need, why = max(need, 1), 'trans->VALU'
                if A.k == 'trans' and B.k == 'trans' and vw & rb: need, why = max(need, 1), 'trans->trans'
            if A.k == 'mfma':
                if B.k == 'mfma':
                    if wa & rb: need, why = passesA + 4, 'MFMA D->MFMA A/B'
                    elif wa & cb and not (wa == cb and mA == mB): need, why = passesA + 2, 'MFMA D->overlapping C'
                    elif wa & wb and not (wa == wb and wa == cb) and not (wa == wb): need, why = passesA + 2, 'MFMA WAW partial'
                elif B.k in ('valu', 'trans'):
                    if wa & (rb | wb): need, why = passesA + 4, 'MFMA D->VALU'
                    elif ca & wb: need, why = passesA - 1, 'MFMA C WAR VALU'
                elif B.k in ('ds', 'vmem'):
                    if wa & (rb | wb): need, why = passesA + 4, 'MFMA D->mem'
            if A.k == 'vmem' and ('store' in mA) and ('x4' in mA or 'x3' in mA):
                data = regs_of(split_ops(A.t)[1][0])
                if data & wb and B.k in ('valu', 'trans'): need, why = max(need, 2), 'store data WAR'
                elif data & wb and B.k != 'mfma': need, why = max(need, 1), 'store data WAR'
            if A.k == 'salu' and ('s', 'm0') in wa and B.k == 'vmem' and ' lds' in B.t: need, why = max(need, 1), 'M0->LDS DMA'
            if need > dist:
                errs.append('%s: %s needs %d has %d\n    %s\n    %s' % (name, why, need, dist, A.t, B.t))
            dist += states(B)
            if dist >= 20: break
    return errs

class Prog:
    def __init__(self):
        self.seq = []
    def __call__(self, s, **kw):
        if isinstance(s, I): self.seq.append(s); return s
        if isinstance(s, (list, tuple)):
            for x in s: self(x)
            return
        last = None
        for l in s.strip('\n').split('\n'):
            l = l.split(';')[0].strip()
            if l:
                last = I(l, **kw); self.seq.append(last)
        return last
    def text(self):
        return ''.join((i.t if i.k == 'label' else '  ' + i.t) + '\n' for i in self.seq)


def fix_m0(seq):
    out = list(seq)
    i = 0
    while i < len(out) - 1:
        a, b = out[i], out[i + 1]
        if a.k == 'salu' and a.t.split()[1].startswith('m0') and b.k == 'vmem' and ' lds' in b.t:
            prev = out[i - 1] if i else None
            srcs = regs_of(a.t.split(None, 1)[1].split(',', 1)[1])
            ok = prev is not None and prev.k in ('mfma', 'valu', 'trans', 'ds', 'salu') and not (rw(prev)[0] & srcs) \
                and not (prev.k == 'salu' and (prev.t.startswith('s_cmp') or prev.t.startswith('s_cselect') or ('s', 'm0') in rw(prev)[0]))
            if ok:
                out[i - 1], out[i] = a, prev
            else:
                out.insert(i + 1, I('s_nop 0')); i += 1
        i += 1
    return out
```

```python
from fw import *
from common import *

NAME = 'k1_proj_kernel'
sW, sH, sB, sRB = 4, 5, 6, 7
SX, SC, SWQ, SWG, SWU, SWK, SWV, SWS, SGW = 8, 12, 16, 20, 24, 28, 32, 36, 40
sM0W, sM0W16, sSOFF, sXB, sCB = 44, 45, 46, 47, 48
sT0, sT1, sT2 = 49, 50, 51
sQSC = 52
sQO, sHO, sKO, sOUT = 53, 54, 55, 56
sCOL, sCOLF = 57, 58
sCNT, sCK, sGRP, sC1 = 59, 60, 61, 62
sHOUT, sNXO = 63, 3
SNX = 96
sKPTR = 64
vLANE, vL16, vL16B = 0, 1, 2
vT = list(range(3, 12))
vVA = [12, 13, 14, 15]
vVB = [16, 17, 18, 19]
vDOFF = list(range(20, 36))
vSOFF = [36, 37, 38, 39]
vRD = [40, 41]
vIO = [42, 43]
vPAT = [44, 45]
vC2, vDUM = 46, 47
XR = 48
ACCG, ACCU, TMP = 160, 192, 224
RING_A = 224
RING_V, ACCKV, TMPKV = 48, 80, 112
PRE = 3
STAMP = False
WS_DBG = 0x0c000000

def stamp_ops():
    return [I('v_mov_b32 v%d, s92' % vDUM), I('buffer_store_dword v%d, off, s[%d:%d], s94' % (vDUM, SWS, SWS + 3)), I('s_add_u32 s94, s94, 4'), I('s_memtime s[92:93]')]

def vr(b, n=4): return 'v[%d:%d]' % (b, b + n - 1)
def ar(b, n=4): return 'a[%d:%d]' % (b, b + n - 1)
def xfrag(s, t): return vr(XR + 8 * s + 4 * t)
def cfrag(s, t): return ar(8 * s + 4 * t)
def acc(base, u, t): return base + 8 * u + 4 * t
def mfma(d, a, b, c): return 'v_mfma_f32_16x16x32_bf16 %s, %s, %s, %s' % (d, a, b, c)

def srd(p, base, ptr, size):
    p('s_mov_b32 s%d, s%d' % (base, ptr))
    p('s_and_b32 s%d, s%d, 0xffff' % (base + 1, ptr + 1))
    p('s_mov_b32 s%d, 0x%x' % (base + 2, size))
    p('s_mov_b32 s%d, 0x20000' % (base + 3))

class Eng:
    def __init__(self): self.sigma = 0; self.uid = 0
    def ring(self, sg, in_agpr, half):
        b = (RING_A if in_agpr else RING_V) + 8 * (sg % 4) + 4 * half
        return ('a' if in_agpr else 'v'), b
    def reads(self, st, slot, sg):
        kp, u = divmod(slot, st['nu'])
        va = vVA if st['buf'] == 0 else vVB
        res = []
        for hf in range(2):
            s = 2 * kp + hf
            cls, b = self.ring(sg, st['ring_a'], hf)
            for j in range(2):
                addr = va[u] if j == 0 else va[u ^ 2]
                self.uid += 1
                res.append(I('ds_read_b64_tr_b16 %s[%d:%d], v%d offset:%d' % (cls, b + 2 * j, b + 2 * j + 1, addr, s * 4096 + 512 * j), tag=('w', self.uid)))
        return res

def nslots(st): return (st['nk'] // 2) * st['nu']

def dma_w(st, first=0, last=None):
    res = []
    nk = st['nk']; m0 = sM0W if nk == 14 else sM0W16
    last = nk if last is None else last
    for x in st['soff']: res.append(I(x))
    for i in range(first, last):
        if i % 4 == 0 or i == first:
            res.append(I('s_add_u32 m0, s%d, %d' % (m0, st['buf'] * 65536 + (i // 4) * 4096)))
        res.append(I('buffer_load_dwordx4 v%d, s[%d:%d], s%d offen offset:%d lds' % (vDOFF[i], st['srd'], st['srd'] + 3, sSOFF, (i % 4) * 1024)))
    return res

def doff_setup(nk, rs):
    res = []
    a = res.append
    a(I('v_lshrrev_b32 v%d, 3, v%d' % (vT[0], vLANE)))
    a(I('s_mul_i32 s%d, s%d, %d' % (sT0, sW, 8 * nk * rs)))
    a(I('v_mul_u32_u24 v%d, %d, v%d' % (vT[1], rs, vT[0])))
    a(I('v_add_u32 v%d, s%d, v%d' % (vT[1], sT0, vT[1])))
    a(I('v_bfe_u32 v%d, v%d, 4, 2' % (vT[2], vLANE)))
    a(I('v_bfe_u32 v%d, v%d, 1, 2' % (vT[3], vLANE)))
    a(I('v_xor_b32 v%d, v%d, v%d' % (vT[2], vT[2], vT[3])))
    a(I('v_and_b32 v%d, 1, v%d' % (vT[3], vLANE)))
    a(I('v_lshlrev_b32 v%d, 4, v%d' % (vT[3], vT[3])))
    a(I('v_add_u32 v%d, v%d, v%d' % (vT[1], vT[1], vT[3])))
    a(I('v_lshl_add_u32 v%d, v%d, 5, v%d' % (vPAT[0], vT[2], vT[1])))
    a(I('v_xor_b32 v%d, 2, v%d' % (vT[2], vT[2])))
    a(I('v_lshl_add_u32 v%d, v%d, 5, v%d' % (vPAT[1], vT[2], vT[1])))
    for i in range(nk):
        a(I('v_add_u32 v%d, 0x%x, v%d' % (vDOFF[i], 8 * i * rs - (i % 4) * 1024, vPAT[i % 2])))
    return res

def staging_offsets(rs):
    res = []
    a = res.append
    a(I('v_lshrrev_b32 v%d, 3, v%d' % (vT[0], vLANE)))
    a(I('s_lshl_b32 s%d, s%d, 5' % (sT0, sRB)))
    a(I('v_add_u32 v%d, s%d, v%d' % (vT[1], sT0, vT[0])))
    a(I('s_mov_b32 s%d, %d' % (sT1, rs)))
    a(I('v_mul_lo_u32 v%d, s%d, v%d' % (vT[1], sT1, vT[1])))
    a(I('v_lshrrev_b32 v%d, 4, v%d' % (vT[2], vLANE)))
    a(I('v_and_b32 v%d, 7, v%d' % (vT[3], vLANE)))
    a(I('v_xor_b32 v%d, v%d, v%d' % (vT[2], vT[2], vT[3])))
    for i in range(4):
        t = vT[4]
        if i % 2:
            a(I('v_xor_b32 v%d, 4, v%d' % (t, vT[2])))
            a(I('v_lshl_add_u32 v%d, v%d, 4, v%d' % (t, t, vT[1])))
        else:
            a(I('v_lshl_add_u32 v%d, v%d, 4, v%d' % (t, vT[2], vT[1])))
        a(I('v_add_u32 v%d, 0x%x, v%d' % (vSOFF[i], 8 * i * rs - 1024 * i, t)))
    return res

def staging_dma(srdreg, ldsreg, slot, chunk):
    res = [I('s_add_u32 m0, s%d, %d' % (ldsreg, slot * 4096)), I('s_movk_i32 s%d, %d' % (sCK, chunk * 128))]
    for i in range(4):
        res.append(I('buffer_load_dwordx4 v%d, s[%d:%d], s%d offen offset:%d lds' % (vSOFF[i], srdreg, srdreg + 3, sCK, i * 1024)))
    return res

def c_reads(eng, chunk):
    res = []
    for sp in range(2):
        for t in range(2):
            eng.uid += 1
            res.append(I('ds_read_b128 %s, v%d offset:%d' % (cfrag(2 * chunk + sp, t), vRD[sp], (chunk % 2) * 4096 + t * 2048), tag=('c', eng.uid)))
    return res

def segment(eng, st, nxt, pre_tags, streams, pending):
    S_ = nslots(st); nu = st['nu']; sg0 = eng.sigma
    mf = []
    rd = Stream('wreads', prio=5)
    tags = {i: pre_tags[i] for i in range(PRE)}
    for slot in range(S_):
        kp, u = divmod(slot, nu)
        if slot + PRE < S_:
            r = eng.reads(st, slot + PRE, sg0 + slot + PRE)
            tags[slot + PRE] = [x.tag for x in r]
            for q, x in enumerate(r): rd.add(x, e=4 * slot + q - 1 if (slot or q) else -1, d=4 * slot + q)
    for slot in range(S_):
        kp, u = divmod(slot, nu)
        for t in range(2):
            for hf in range(2):
                s = 2 * kp + hf
                cls, b = eng.ring(sg0 + slot, st['ring_a'], hf)
                wf = '%s[%d:%d]' % (cls, b, b + 3)
                rf = st['res'](st['k0'] + s, t)
                d = vr(acc(st['acc'], u, t))
                c = '0' if (st['first'] and s == 0) else d
                need = ()
                if t == 0 and hf == 0:
                    need = list(tags[slot])
                    if slot % 2 == 0 and slot + 1 < S_ and slot + 1 >= PRE: need += tags[slot + 1]
                mf.append(I(mfma(d, rf, wf, c) if st['swap'] else mfma(d, wf, rf, c), need=need))
    n = len(mf)
    nxt_tags = None
    bar_gap = 4 * (S_ - PRE) + 3
    bs = Stream('bar', prio=9)
    if nxt is not None:
        bs.add(I('s_waitcnt vmcnt(%d) lgkmcnt(0)' % st.get('vm_end', 0)), e=bar_gap, d=bar_gap)
        bs.add(I('s_barrier'), e=bar_gap, d=bar_gap)
        if STAMP:
            for x in stamp_ops(): bs.add(x, e=bar_gap, d=bar_gap)
        nxt_tags = []
        k = 0
        for ps in range(PRE):
            r = eng.reads(nxt, ps, sg0 + S_ + ps)
            nxt_tags.append([x.tag for x in r])
            for q, x in enumerate(r):
                e = bar_gap + 1 + k // 2 if ps < 2 else 4 * (S_ - 1) + q - 1
                k += 1
                e = min(max(e, bar_gap + 1), n - 1)
                bs.add(x, e=e, d=e)
    eng.sigma = sg0 + S_
    extra = []
    if st.get('mid_bar'):
        mb = Stream('midbar', prio=9)
        mb.add(I('s_waitcnt vmcnt(63)', tag='MID'), e=st['mid_bar'], d=st['mid_bar'])
        mb.add(I('s_barrier'), e=st['mid_bar'], d=st['mid_bar'])
        extra.append(mb)
    seq = pack(mf, extra + [rd, bs] + streams, budget=8)
    for i, x in enumerate(seq):
        if x.tag == 'MID':
            seq[i] = I('s_waitcnt vmcnt(%d)' % sum(1 for y in seq[:i] if y.k == 'vmem'))
    seq, pend = insert_lgkm_waits(seq, pending)
    return seq, nxt_tags, pend, n

def store(src, voff, off, so=None):
    return I('buffer_store_dwordx4 %s, v%d, s[%d:%d], s%d offen offset:%d' % (vr(src), voff, SWS, SWS + 3, sOUT if so is None else so, off))

def epilogue(kind, accb, tmpb, n, soff, scale=False):
    fin = lambda u, t: n - 16 + 4 * u + 2 * t + 1
    ovw = lambda u, t: n + 4 * u + 2 * t
    ops = [(0, ovw(0, 0) - 1, I(x)) for x in soff]
    frs = []
    if kind in ('q', 'k'):
        for p in range(2):
            for t in range(2): frs.append(((2 * p, t), (2 * p + 1, t), vL16 if t == 0 else vL16B, p * 1024))
    else:
        for u in range(4): frs.append(((u, 0), (u, 1), vL16, u * 1024))
    for fi, (A, B, voff, off) in enumerate(frs):
        dst = tmpb + 4 * fi
        for half, (u, t) in enumerate((A, B)):
            a0 = acc(accb, u, t); e = fin(u, t) + 6; d = ovw(u, t) - 1
            if scale:
                for r in range(4): ops.append((e, d, I('v_mul_f32 v%d, s%d, v%d' % (a0 + r, sQSC, a0 + r))))
            ops.append((e, d, I('v_cvt_pk_bf16_f32 v%d, v%d, v%d' % (dst + 2 * half, a0, a0 + 1))))
            ops.append((e, d, I('v_cvt_pk_bf16_f32 v%d, v%d, v%d' % (dst + 2 * half + 1, a0 + 2, a0 + 3))))
        ops.append((e, n + 40, store(dst, voff, off)))
    cur = Stream('epi', prio=4)
    carry = []
    last_e = -1
    for (e, d, ins) in ops:
        last_e = max(last_e, e)
        if last_e <= n - 1: cur.add(ins, e=last_e, d=d)
        else: carry.append((last_e - n, d - n, ins))
    return cur, carry

def gelu_stream(gbase, nu, name):
    st = Stream(name, prio=1, elastic=True)
    for u in range(nu):
        for t in range(2):
            a0 = acc(gbase, u, t); T = vT[4:8]
            for r in range(4): st.add('v_mul_f32 v%d, v%d, v%d' % (T[r], a0 + r, a0 + r))
            for r in range(4): st.add('v_fma_f32 v%d, v%d, v%d, s%d' % (T[r], T[r], vC2, sC1))
            for r in range(4): st.add('v_mul_f32 v%d, v%d, v%d' % (T[r], a0 + r, T[r]))
            for r in range(4): st.add('v_exp_f32 v%d, v%d' % (T[r], T[r]))
            for r in range(4): st.add('v_fma_f32 v%d, v%d, v%d, v%d' % (T[r], T[r], vIO[t], vIO[t]))
            for r in range(4): st.add('v_rcp_f32 v%d, v%d' % (T[r], T[r]))
            for r in range(4): st.add('v_mul_f32 v%d, v%d, v%d' % (a0 + r, a0 + r, T[r]))
    return st


def ffn_finish(st, gbase, ubase, nu, dg, e0):
    st.add('s_add_u32 s%d, s%d, %d' % (sHOUT, sHO, dg * 4096), e=e0)
    for p_ in range(2):
        for t in range(2):
            dst = acc(ubase, 2 * p_, t)
            for half in range(2):
                u = 2 * p_ + half
                if u < nu:
                    g0 = acc(gbase, u, t); u0 = acc(ubase, u, t)
                    for r in range(4): st.add('v_mul_f32 v%d, v%d, v%d' % (g0 + r, g0 + r, u0 + r), e=e0)
                    st.add('v_cvt_pk_bf16_f32 v%d, v%d, v%d' % (dst + 2 * half, g0, g0 + 1), e=e0)
                    st.add('v_cvt_pk_bf16_f32 v%d, v%d, v%d' % (dst + 2 * half + 1, g0 + 2, g0 + 3), e=e0)
                else:
                    st.add('v_mov_b32 v%d, 0' % (dst + 2 * half), e=e0)
                    st.add('v_mov_b32 v%d, 0' % (dst + 2 * half + 1), e=e0)
            st.add(store(dst, vL16, p_ * 2048 + t * 1024, so=sHOUT), e=e0)

def spread(name, ins, n, lo=0.0, hi=0.55, dl=0.62, prio=3):
    s = Stream(name, prio=prio)
    for i, x in enumerate(ins):
        e = int(n * (lo + (hi - lo) * i / len(ins)))
        s.add(x, e=e - 1 if i == 0 else e, d=int(n * dl))
    return s

def flush(p, stream):
    for (_, _, x) in stream.items: p(x)
    stream.items = []

def kv_stage(kind, half, srd_, soff, buf):
    return dict(nk=16, nu=4, k0=16 * half, first=(half == 0), res=cfrag, swap=(kind == 'v'), acc=ACCKV, ring_a=False,
                srd=srd_, soff=soff, buf=buf)

def epi_soff(kind):
    if kind == 'k': return ['s_lshl_b32 s%d, s%d, 4' % (sOUT, sGRP), 's_add_u32 s%d, s%d, s%d' % (sOUT, sOUT, sKO)]
    return ['s_lshl_b32 s%d, s%d, 5' % (sOUT, sGRP), 's_add_u32 s%d, s%d, s%d' % (sOUT, sOUT, sKO), 's_add_u32 s%d, s%d, 0x4000' % (sOUT, sOUT)]

def make_epi(kind, accb, tmpb, n, soff, scale=False):
    ep, carry = epilogue(kind, accb, tmpb, n, soff, scale)
    k = len(soff)
    for i in range(k): ep.items[i] = (int(n * 0.7), ep.items[i][1], ep.items[i][2])
    return ep, carry

def carry_stream(items):
    s = Stream('carry', prio=6)
    s.items = list(items)
    return s

def build():
    p = Prog()
    eng = Eng()
    p('%s:' % NAME)
    p('s_cmp_ge_u32 s2, 256')
    p('s_cbranch_scc1 L_k1_end')
    p('s_load_dwordx16 s[%d:%d], s[0:1], 0' % (sKPTR, sKPTR + 15))
    p('s_load_dwordx8 s[%d:%d], s[0:1], 64' % (sKPTR + 16, sKPTR + 23))
    p('s_load_dwordx4 s[%d:%d], s[0:1], 96' % (sKPTR + 24, sKPTR + 27))
    p('s_getpc_b64 s[92:93]')
    p('s_mov_b32 s94, 0x10000')
    p('s_mov_b32 s95, 0x20000')
    p('v_lshlrev_b32 v3, 7, v0')
    p('buffer_load_dword v%d, v3, s[92:95], 0 offen' % vDUM)
    p('v_add_u32 v3, 0x8000, v3')
    p('buffer_load_dword v%d, v3, s[92:95], 0 offen' % vDUM)
    p('v_lshrrev_b32 v3, 6, v0')
    p('v_and_b32 v%d, 63, v0' % vLANE)
    p('v_readfirstlane_b32 s%d, v3' % sW)
    p('s_and_b32 s3, s2, 7')
    p('s_lshr_b32 s%d, s2, 3' % sT0)
    p('s_and_b32 s%d, s%d, 1' % (sT1, sT0))
    p('s_lshl_b32 s3, s3, 1')
    p('s_add_u32 s%d, s3, s%d' % (sH, sT1))
    p('s_lshr_b32 s%d, s%d, 1' % (sB, sT0))
    p('s_lshl_b32 s%d, s%d, 2' % (sRB, sB))
    p('s_add_u32 s%d, s%d, s%d' % (sRB, sRB, sW))
    p('v_lshlrev_b32 v%d, 4, v%d' % (vL16, vLANE))
    p('v_add_u32 v%d, 0x2000, v%d' % (vL16B, vL16))
    p('s_mul_i32 s%d, s%d, %d' % (sM0W, sW, 14 * 1024))
    p('s_mul_i32 s%d, s%d, %d' % (sM0W16, sW, 16 * 1024))
    p('s_mul_i32 s%d, s%d, %d' % (sXB, sW, 28 * 1024))
    p('s_add_u32 s%d, s%d, %d' % (sXB, sXB, 48 * 1024))
    p('s_lshl_b32 s%d, s%d, 13' % (sCB, sW))
    p('s_add_u32 s%d, s%d, %d' % (sCB, sCB, 128 * 1024))
    p('s_lshl_b32 s%d, s%d, 9' % (sCOL, sH))
    p('s_mul_i32 s%d, s%d, 224' % (sCOLF, sH))
    p('s_mov_b32 s%d, %s' % (sQSC, hexf(LOG2E / 16.0)))
    c1 = -2.0 * LOG2E * 0.7978845608028654
    p('s_mov_b32 s%d, %s' % (sC1, hexf(c1)))
    p('v_mov_b32 v%d, %s' % (vC2, hexf(c1 * 0.044715)))
    p('s_lshl_b32 s%d, s%d, 6' % (sT0, sH))
    p('s_add_u32 s%d, s%d, s%d' % (sT0, sT0, sRB))
    p('s_lshl_b32 s%d, s%d, 14' % (sQO, sT0))
    p('s_add_u32 s%d, s%d, 0x%x' % (sQO, sQO, WS_Q))
    p('s_lshl_b32 s%d, s%d, 15' % (sKO, sT0))
    p('s_lshl_b32 s%d, s%d, 4' % (sT0, sRB))
    p('s_add_u32 s%d, s%d, s%d' % (sT0, sT0, sH))
    p('s_lshl_b32 s%d, s%d, 13' % (sHO, sT0))
    p('s_add_u32 s%d, s%d, 0x%x' % (sHO, sHO, WS_H))
    p('s_waitcnt lgkmcnt(0)')
    kp = lambda n: sKPTR + KA[n] // 4
    srd(p, SX, kp('x'), SZ['x']); srd(p, SC, kp('c'), SZ['c']); srd(p, SWQ, kp('wq'), SZ['wq'])
    srd(p, SWG, kp('wg'), SZ['wg']); srd(p, SWU, kp('wu'), SZ['wu']); srd(p, SWK, kp('wuk'), SZ['wuk'])
    srd(p, SWV, kp('wuv'), SZ['wuv']); srd(p, SWS, kp('ws'), SZ['ws']); srd(p, SGW, kp('gw'), SZ['gw'])
    srd(p, SNX, kp('wuk'), SZ['wuk'])
    if STAMP:
        p('s_lshl_b32 s94, s2, 2')
        p('s_add_u32 s94, s94, s%d' % sW)
        p('s_lshl_b32 s94, s94, 8')
        p('s_add_u32 s94, s94, 0x%x' % WS_DBG)
        p('s_memrealtime s[92:93]')
        p('s_waitcnt lgkmcnt(0)')
        p(stamp_ops())
        p('s_waitcnt lgkmcnt(0)')
    p(staging_offsets(M * 2))
    for ch in range(7): p(staging_dma(SX, sXB, ch, ch))
    stages = []
    for G in range(4):
        stages.append(dict(nk=14, nu=4, k0=0, first=True, res=xfrag, swap=False, acc=ACCG, ring_a=True, srd=SWQ,
                           soff=['s_add_u32 s%d, s%d, %d' % (sSOFF, sCOL, G * 128)]))
    for dg in range(2):
        nu = 4 if dg == 0 else 3
        so = ['s_add_u32 s%d, s%d, %d' % (sSOFF, sCOLF, dg * 128)]
        stages.append(dict(nk=14, nu=nu, k0=0, first=True, res=xfrag, swap=False, acc=ACCG if dg == 0 else TMP, ring_a=True, srd=SWG, soff=so))
        stages.append(dict(nk=14, nu=nu, k0=0, first=True, res=xfrag, swap=False, acc=ACCU, ring_a=True, srd=SWU, soff=so))
    for i, st in enumerate(stages): st['buf'] = i % 2
    stages.append(kv_stage('k', 0, SWK, ['s_mov_b32 s%d, s%d' % (sSOFF, sCOL)], 0))
    stages.append(kv_stage('k', 1, SWK, ['s_add_u32 s%d, s%d, %d' % (sSOFF, sCOL, 512 * 8192)], 1))
    st0 = stages[0]
    st0['mid_bar'] = 76
    p(doff_setup(14, H * D * 2))
    p(st0['soff'])
    p('s_cmp_eq_u32 s%d, 3' % sW)
    p('s_cbranch_scc1 L_k1_w3a')
    p(dma_w(st0)[1:])
    p('s_branch L_k1_w3b')
    p('L_k1_w3a:')
    p(dma_w(st0, 0, 6)[1:])
    p('L_k1_w3b:')
    p('v_lshrrev_b32 v%d, 4, v%d' % (vT[0], vLANE))
    p('v_lshlrev_b32 v%d, 4, v%d' % (vT[0], vT[0]))
    for s in range(14):
        p('buffer_load_dwordx4 %s, v%d, s[%d:%d], 0 offen offset:%d' % (ar(4 * s), vT[0], SGW, SGW + 3, 64 * s))
    p('v_lshrrev_b32 v%d, 4, v%d' % (vT[0], vLANE))
    p('v_bfe_u32 v%d, v%d, 2, 2' % (vT[1], vLANE))
    p('v_and_b32 v%d, 3, v%d' % (vT[2], vLANE))
    p('v_lshl_add_u32 v%d, v%d, 3, v%d' % (vT[3], vT[0], vT[1]))
    p('v_lshlrev_b32 v%d, 7, v%d' % (vT[3], vT[3]))
    p('v_lshl_add_u32 v%d, v%d, 3, v%d' % (vT[3], vT[2], vT[3]))
    p('v_lshrrev_b32 v%d, 1, v%d' % (vT[4], vT[1]))
    p('v_and_b32 v%d, 1, v%d' % (vT[5], vT[0]))
    p('v_lshlrev_b32 v%d, 1, v%d' % (vT[5], vT[5]))
    p('v_xor_b32 v%d, v%d, v%d' % (vT[4], vT[4], vT[5]))
    for v in range(4):
        p('v_xor_b32 v%d, %d, v%d' % (vT[5], v, vT[4]))
        p('v_lshl_add_u32 v%d, v%d, 5, v%d' % (vVA[v], vT[5], vT[3]))
        p('v_add_u32 v%d, 0x10000, v%d' % (vVB[v], vVA[v]))
    p('v_and_b32 v%d, 15, v%d' % (vT[1], vLANE))
    p('v_bfe_u32 v%d, v%d, 1, 3' % (vT[2], vLANE))
    p('v_xor_b32 v%d, v%d, v%d' % (vT[2], vT[2], vT[0]))
    p('v_lshlrev_b32 v%d, 7, v%d' % (vT[1], vT[1]))
    p('v_lshl_add_u32 v%d, v%d, 4, v%d' % (vRD[0], vT[2], vT[1]))
    p('v_xor_b32 v%d, 64, v%d' % (vRD[1], vRD[0]))
    p('v_add_u32 v%d, s%d, v%d' % (vT[6], sXB, vRD[0]))
    p('v_add_u32 v%d, s%d, v%d' % (vT[7], sXB, vRD[1]))
    p('v_add_u32 v%d, s%d, v%d' % (vRD[0], sCB, vRD[0]))
    p('v_add_u32 v%d, s%d, v%d' % (vRD[1], sCB, vRD[1]))
    p('s_waitcnt vmcnt(0)')
    for ch in range(7):
        for sp in range(2):
            for t in range(2):
                p('ds_read_b128 %s, v%d offset:%d' % (xfrag(2 * ch + sp, t), vT[6 + sp], ch * 4096 + t * 2048))
    p(staging_offsets(DC * 2))
    p('s_waitcnt lgkmcnt(0)')
    p('s_barrier')
    p('s_cmp_eq_u32 s%d, 3' % sW)
    p('s_cbranch_scc0 L_k1_w3c')
    p(dma_w(st0, 6, 14)[1:])
    p('L_k1_w3c:')
    pre = []
    for ps in range(PRE):
        r = eng.reads(stages[0], ps, ps); pre.append([x.tag for x in r]); p(r)
    for t in range(2):
        for s in range(14):
            p(mfma(vr(TMP + 4 * t), ar(4 * s), xfrag(s, t), '0' if s == 0 else vr(TMP + 4 * t)))
    p('s_nop 7')
    for t in range(2): p('v_mul_f32 v%d, %s, v%d' % (vT[t], hexf(-LOG2E), TMP + 4 * t))
    for t in range(2): p('v_exp_f32 v%d, v%d' % (vT[t], vT[t]))
    p('s_nop 0')
    for t in range(2): p('v_add_f32 v%d, 1.0, v%d' % (vT[t], vT[t]))
    for t in range(2): p('v_rcp_f32 v%d, v%d' % (vT[t], vT[t]))
    p('s_nop 0')
    for t in range(2):
        p('v_sub_f32 v%d, 1.0, v%d' % (vT[2 + t], vT[t]))
        p('v_max_f32 v%d, 0x0da24260, v%d' % (vT[2 + t], vT[2 + t]))
    for t in range(2): p('v_rcp_f32 v%d, v%d' % (vIO[t], vT[2 + t]))
    p('s_cmp_eq_u32 s%d, 0' % sH)
    p('s_cbranch_scc0 L_k1_nog')
    p('v_and_b32 v%d, 15, v%d' % (vT[4], vLANE))
    p('v_lshlrev_b32 v%d, 2, v%d' % (vT[4], vT[4]))
    p('s_lshl_b32 s%d, s%d, 7' % (sT0, sRB))
    p('s_add_u32 s%d, s%d, 0x%x' % (sT0, sT0, WS_G))
    p('buffer_store_dword v%d, v%d, s[%d:%d], s%d offen' % (vT[0], vT[4], SWS, SWS + 3, sT0))
    p('buffer_store_dword v%d, v%d, s[%d:%d], s%d offen offset:64' % (vT[1], vT[4], SWS, SWS + 3, sT0))
    p('v_mov_b32 v%d, 0' % vT[5])
    p('v_lshlrev_b32 v%d, 2, v%d' % (vT[6], vLANE))
    p('s_lshl_b32 s%d, s%d, 8' % (sT0, sRB))
    p('s_add_u32 s%d, s%d, 0x%x' % (sT0, sT0, WS_FL))
    p('buffer_store_dword v%d, v%d, s[%d:%d], s%d offen' % (vT[5], vT[6], SWS, SWS + 3, sT0))
    p('L_k1_nog:')
    p('s_waitcnt lgkmcnt(0)')
    if STAMP:
        p(stamp_ops())
    pend = []
    carry = None; g0 = g1 = None
    loop_a = kv_stage('k', 0, SNX, ['s_add_u32 s%d, s%d, 128' % (sSOFF, sCOL)], 0)
    for n_, st in enumerate(stages):
        nxt = stages[n_ + 1] if n_ + 1 < len(stages) else loop_a
        nm = nslots(st) * 4
        streams = []
        d = []
        if n_ == 3: d += doff_setup(14, F * 2)
        if n_ == 7: d += doff_setup(16, H * D * 2)
        d += dma_w(nxt)
        ds_ = spread('dma', d, nm, hi=0.42, dl=0.5)
        cs = Stream('cload', prio=2)
        rs = []
        if 1 <= n_ <= 8:
            rs = c_reads(eng, 2 * n_ - 2) + c_reads(eng, 2 * n_ - 1)
            for x in rs: cs.add(x, e=0, d=int(nm * 0.4))
        if n_ <= 7:
            dm = staging_dma(SC, sCB, 0, 2 * n_) + staging_dma(SC, sCB, 1, 2 * n_ + 1)
            if rs: dm[0] = I(dm[0].t, need=[y.tag for y in rs])
            for i_, x in enumerate(dm): ds_.add(x, e=int(nm * (0.45 + 0.2 * i_ / len(dm))), d=int(nm * 0.72))
        streams.append(ds_)
        streams.append(cs)
        if carry is not None: streams.append(carry_stream(carry))
        newepi = None; newcarry = None
        if n_ < 4: newepi, newcarry = make_epi('q', ACCG, ACCU, nm, ['s_add_u32 s%d, s%d, %d' % (sOUT, sQO, n_ * 2048)], scale=True)
        if n_ == 9: newepi, newcarry = make_epi('k', ACCKV, TMPKV, nm, ['s_mov_b32 s%d, s%d' % (sOUT, sKO)])
        if newepi is not None: streams.append(newepi)
        if n_ == 5:
            g0 = gelu_stream(ACCG, 4, 'gelu0'); g0.items = [(6, dd, x) for (_, dd, x) in g0.items]
        if n_ == 6: ffn_finish(g0, ACCG, ACCU, 4, 0, 6)
        if n_ == 7:
            g1 = gelu_stream(TMP, 3, 'gelu1'); g1.items = [(6, dd, x) for (_, dd, x) in g1.items]
        if n_ == 8: ffn_finish(g1, TMP, ACCU, 3, 1, 6)
        if n_ in (5, 6): streams.append(g0)
        if n_ in (7, 8, 9): streams.append(g1)
        seq, pre, pend, n = segment(eng, st, nxt, pre, streams, pend)
        p(seq)
        if n_ == 6: flush(p, g0)
        if n_ == 9: flush(p, g1)
        carry = newcarry
    def kv_loop(kind, label, count, pre, pend):
        own = SWK if kind == 'k' else SWV
        p('s_movk_i32 s%d, %d' % (sCNT, count))
        p(label + ':')
        a = kv_stage(kind, 0, own, None, 0)
        b = kv_stage(kind, 1, own, ['s_add_u32 s%d, s%d, s%d' % (sSOFF, sCOL, sGRP), 's_add_u32 s%d, s%d, %d' % (sSOFF, sSOFF, 512 * 8192)], 1)
        nx = ['s_cmp_eq_u32 s%d, 1' % sCNT, 's_add_u32 s%d, s%d, 128' % (sNXO, sGRP)]
        nx = ['s_add_u32 s%d, s%d, 128' % (sNXO, sGRP), 's_add_u32 s%d, s%d, s%d' % (sNXO, sNXO, sCOL), 's_cmp_eq_u32 s%d, 1' % sCNT]
        if kind == 'k':
            nx += ['s_cselect_b32 s%d, s%d, s%d' % (sSOFF, sCOL, sNXO),
                   's_cselect_b32 s%d, s%d, s%d' % (SNX, SWV, SWK), 's_cselect_b32 s%d, s%d, s%d' % (SNX + 1, SWV + 1, SWK + 1)]
        else:
            nx += ['s_cselect_b32 s%d, 0x10000000, s%d' % (sSOFF, sNXO)]
        c = kv_stage(kind, 0, SNX, nx, 0)
        ep, cout = make_epi(kind, ACCKV, TMPKV, 128, epi_soff(kind))
        seq, pre1, pend1, n = segment(eng, a, b, pre, [spread('dma', dma_w(b), 128), carry_stream(cout)], pend)
        p(seq)
        d = dma_w(c)
        seq, pre2, pend2, n = segment(eng, b, c, pre1, [spread('dma', d, 128), ep], pend1)
        p(seq)
        p('s_add_u32 s%d, s%d, 128' % (sGRP, sGRP))
        p('s_sub_u32 s%d, s%d, 1' % (sCNT, sCNT))
        p('s_cmp_lg_u32 s%d, 0' % sCNT)
        p('s_cbranch_scc1 %s' % label)
        return cout
    flat = [t for grp in pre for t in grp]
    p('s_movk_i32 s%d, 128' % sGRP)
    cout = kv_loop('k', 'L_k1_kloop', 3, pre, flat)
    p('s_nop 7')
    p([x for (_, _, x) in cout])
    p('s_mov_b32 s%d, 0x10000000' % sOUT)
    p('s_movk_i32 s%d, 0' % sGRP)
    cout = kv_loop('v', 'L_k1_vloop', 4, pre, flat)
    p('s_nop 7')
    p([x for (_, _, x) in cout])
    if STAMP:
        p('s_waitcnt vmcnt(0) lgkmcnt(0)')
        p(stamp_ops())
        p('s_waitcnt lgkmcnt(0)')
        p(stamp_ops())
        p('s_memrealtime s[92:93]')
        p('s_waitcnt lgkmcnt(0)')
        p(stamp_ops()[:3])
    p('L_k1_end:')
    p('s_endpgm')
    return p

if __name__ == '__main__':
    p = build()
    p.seq = fix_m0(p.seq)
    errs = lint(p.seq, 'k1')
    for e in errs[:30]: print(e)
    print(len(p.seq), 'instructions;', len(errs), 'lint errors')
    open('k1_body.s', 'w').write(p.text())
```

```python
from fw import *
from common import *

NAME = 'k2_attn_kernel'
STAMP = False
WS_DBG = 0x0c000000 + (1 << 20)
sW, sH, sJ, sROLE = 4, 5, 6, 7
SWS, SWO, SWD = 8, 12, 16
sKVB, sKB, sN, sMK, sB = 20, 21, 22, 23, 24
sM0, sT0, sT1, sT2, sT3 = 25, 26, 27, 28, 29
sPHASE, sCLAMP, sTHR, sRB, sSO = 30, 31, 32, 33, 34
sKB0, sCNT, sPM, sFL, sOUT = 35, 36, 37, 38, 39
sMSK = 40
sRET = 48
sM0W, sSOA, sSOB, sPO = 50, 51, 52, 53
sM0L, sM0A, sM0B = 54, 55, 56
sKPTR = 64
O0 = 0
S0, S1, E0, P0, P1, NEGM = 128, 144, 160, 176, 184, 192
vL = [200, 201]; vTS = [202, 203]; vM = [204, 205]
vCUR, vPRV, vL16, vDK, vLANE, vRG, vNINF = 206, 207, 208, 209, 210, 211, 212
vG = [213, 214]
vT = list(range(215, 231))
vVA = [231, 232, 233, 234]; vVB = [235, 236, 237, 238]
vDO = list(range(239, 251))
vST = [251, 252, 253, 254]
vDUM = 255
QF, KA_, KB_, VR, HF, WR = 0, 64, 96, 128, 160, 192

def vr(b, n=4): return 'v[%d:%d]' % (b, b + n - 1)
def ar(b, n=4): return 'a[%d:%d]' % (b, b + n - 1)
def mfma(d, a, b, c): return 'v_mfma_f32_16x16x32_bf16 %s, %s, %s, %s' % (d, a, b, c)
def Oacc(dt, qt): return O0 + 8 * dt + 4 * qt
def Sacc(buf, kt, qt): return (S0 if buf == 0 else S1) + 8 * kt + 4 * qt
def Ereg(kt, qt): return E0 + 8 * kt + 4 * qt
def Preg(buf, qt): return (P0 if buf == 0 else P1) + 4 * qt

def srd(p, base, ptr, size):
    p('s_mov_b32 s%d, s%d' % (base, ptr))
    p('s_and_b32 s%d, s%d, 0xffff' % (base + 1, ptr + 1))
    p('s_mov_b32 s%d, 0x%x' % (base + 2, size))
    p('s_mov_b32 s%d, 0x20000' % (base + 3))

_uid = [0]
def rd(dst, addr, off):
    _uid[0] += 1
    return I('ds_read_b128 %s, v%d offset:%d' % (dst, addr, off), tag=('r', _uid[0]))

def piece(lds_off, src_reg, src_add, m0reg=None):
    r = [I('s_add_u32 s%d, s%d, %d' % (sSO, src_reg, src_add)), I('s_add_u32 m0, s%d, %d' % (sM0 if m0reg is None else m0reg, lds_off))]
    for i in range(4):
        r.append(I('buffer_load_dwordx4 v%d, s[%d:%d], s%d offen offset:%d lds' % (vDK, SWS, SWS + 3, sSO, i * 1024)))
    return r

def qk_mfmas(sbuf, tagsA, tagsB):
    mf = []
    for kt in range(2):
        for qt in range(2):
            for s in range(8):
                d = vr(Sacc(sbuf, kt, qt))
                c = vr(NEGM + 4 * qt) if s == 0 else d
                need = ()
                if qt == 0 and s % 4 == 0:
                    tg = tagsA if kt == 0 else tagsB
                    need = tg[s:s + 4] if tg else ()
                mf.append(I(mfma(d, ar((KA_ if kt == 0 else KB_) + 4 * s), ar(QF + 32 * qt + 4 * s), c), need=need))
    return mf

def pv_mfmas(pbuf, vtags):
    mf = []
    for dt in range(16):
        for qt in range(2):
            d = vr(Oacc(dt, qt))
            need = ()
            if qt == 0 and dt % 2 == 0: need = [t for t in vtags[dt:dt + 2] if t]
            mf.append(I(mfma(d, ar(VR + 4 * (dt % 8)), vr(Preg(pbuf, qt)), d), need=need))
    return mf

def softmax_parts(sb):
    p1, p2 = [], []
    for qt in range(2):
        for i in range(4): p1.append(I('v_exp_f32 v%d, v%d' % (Ereg(0, qt) + i, Sacc(sb, 0, qt) + i)))
    for qt in range(2):
        e = Ereg(0, qt)
        p1.append(I('v_add_f32 v%d, v%d, v%d' % (vTS[qt], e, e + 1)))
    for qt in range(2):
        for i in range(4): p2.append(I('v_exp_f32 v%d, v%d' % (Ereg(1, qt) + i, Sacc(sb, 1, qt) + i)))
        e = Ereg(0, qt)
        p2.append(I('v_add_f32 v%d, v%d, v%d' % (vTS[qt], vTS[qt], e + 2)))
        p2.append(I('v_add_f32 v%d, v%d, v%d' % (vTS[qt], vTS[qt], e + 3)))
        p2.append(I('v_cvt_pk_bf16_f32 v%d, v%d, v%d' % (Preg(sb, qt), e, e + 1)))
        p2.append(I('v_cvt_pk_bf16_f32 v%d, v%d, v%d' % (Preg(sb, qt) + 1, e + 2, e + 3)))
    for qt in range(2):
        e = Ereg(1, qt)
        for i in range(4): p2.append(I('v_add_f32 v%d, v%d, v%d' % (vTS[qt], vTS[qt], e + i)))
        p2.append(I('v_cvt_pk_bf16_f32 v%d, v%d, v%d' % (Preg(sb, qt) + 2, e, e + 1)))
        p2.append(I('v_cvt_pk_bf16_f32 v%d, v%d, v%d' % (Preg(sb, qt) + 3, e + 2, e + 3)))
    p2.append(I('v_max_f32 v%d, v%d, v%d' % (vT[0], vTS[0], vTS[1])))
    p2.append(I('v_cmp_lt_f32 vcc, s%d, v%d' % (sTHR, vT[0])))
    return p1, p2

def l_update():
    return [I('v_add_f32 v%d, v%d, v%d' % (vL[qt], vL[qt], vTS[qt])) for qt in range(2)]

def mask_block(p, sb, label, back):
    p(label + ':')
    p('s_nop 7')
    p('s_lshl_b32 s%d, s%d, 5' % (sT0, sMK))
    p('v_add_u32 v%d, s%d, v%d' % (vT[1], sT0, vRG))
    p('v_add_u32 v%d, 16, v%d' % (vT[2], vT[1]))
    for kt in range(2):
        for qt in range(2):
            for i in range(4):
                p('v_cmp_gt_i32 s[%d:%d], %d, v%d' % (sMSK + 2 * i, sMSK + 2 * i + 1, 16 * kt + i, vT[1 + qt]))
            for i in range(4):
                r = Sacc(sb, kt, qt) + i
                p('v_cndmask_b32 v%d, v%d, v%d, s[%d:%d]' % (r, r, vNINF, sMSK + 2 * i, sMSK + 2 * i + 1))
    p('s_branch %s' % back)

def allreduce(p, op, regs, tmp):
    for r, t in zip(regs, tmp): p('v_mov_b32 v%d, v%d' % (t, r))
    p('s_nop 1')
    for r, t in zip(regs, tmp): p('v_permlane32_swap_b32 v%d, v%d' % (r, t))
    p('s_nop 1')
    for r, t in zip(regs, tmp): p('%s v%d, v%d, v%d' % (op, r, r, t))
    for r, t in zip(regs, tmp): p('v_mov_b32 v%d, v%d' % (t, r))
    p('s_nop 1')
    for r, t in zip(regs, tmp): p('v_permlane16_swap_b32 v%d, v%d' % (r, t))
    p('s_nop 1')
    for r, t in zip(regs, tmp): p('%s v%d, v%d, v%d' % (op, r, r, t))

def slow_path(p, sb, label):
    ob = 1 - sb
    p(label + ':')
    p('s_nop 7')
    d = [vT[2], vT[3]]
    for qt in range(2):
        a, b = Sacc(sb, 0, qt), Sacc(sb, 1, qt)
        p('v_max3_f32 v%d, v%d, v%d, v%d' % (d[qt], a, a + 1, a + 2))
        p('v_max3_f32 v%d, v%d, v%d, v%d' % (d[qt], d[qt], a + 3, b))
        p('v_max3_f32 v%d, v%d, v%d, v%d' % (d[qt], d[qt], b + 1, b + 2))
        p('v_max_f32 v%d, v%d, v%d' % (d[qt], d[qt], b + 3))
    allreduce(p, 'v_max_f32', d, [vT[4], vT[5]])
    for qt in range(2): p('v_max_f32 v%d, s%d, v%d' % (d[qt], sCLAMP, d[qt]))
    f = [vT[4], vT[5]]
    for qt in range(2):
        p('v_add_f32 v%d, v%d, v%d' % (vM[qt], vM[qt], d[qt]))
        p('v_sub_f32 v%d, 0, v%d' % (f[qt], d[qt]))
        p('v_min_f32 v%d, 0, v%d' % (f[qt], f[qt]))
    for qt in range(2): p('v_exp_f32 v%d, v%d' % (f[qt], f[qt]))
    for qt in range(2):
        for i in range(4): p('v_sub_f32 v%d, 0, v%d' % (NEGM + 4 * qt + i, vM[qt]))
    for qt in range(2): p('v_mul_f32 v%d, v%d, v%d' % (vL[qt], vL[qt], f[qt]))
    for buf in (sb, ob):
        for kt in range(2):
            for qt in range(2):
                for i in range(4):
                    r = Sacc(buf, kt, qt) + i
                    p('v_sub_f32 v%d, v%d, v%d' % (r, r, d[qt]))
    p1, p2 = softmax_parts(sb)
    if sb == 0:
        p('s_cmp_eq_u32 s%d, 1' % sT3)
        p('s_cbranch_scc0 %s_full' % label)
        p([I(x.t) for x in p1])
        p('s_branch L_k2_pro_back')
        p(label + '_full:')
    for dt in range(16):
        for qt in range(2):
            for i in range(4):
                r = Oacc(dt, qt) + i
                p('v_mul_f32 v%d, v%d, v%d' % (r, r, f[qt]))
    p(p1); p('s_nop 0'); p(p2[:-2])
    p('s_nop 1')
    p('s_branch %s_back' % label)

def stamp_ops():
    return [I('v_mov_b32 v%d, s92' % vDUM), I('buffer_store_dword v%d, off, s[%d:%d], s94' % (vDUM, SWS, SWS + 3)), I('s_add_u32 s94, s94, 4'), I('s_memtime s[92:93]')]

PRE = 3
class Eng:
    def __init__(self): self.sigma = 0; self.uid = 0
    def reads(self, buf, slot, sg):
        kp, u = divmod(slot, 4)
        va = vVA if buf == 0 else vVB
        res = []
        for hf in range(2):
            s = 2 * kp + hf
            b = WR + 8 * (sg % 4) + 4 * hf
            for j in range(2):
                self.uid += 1
                res.append(I('ds_read_b64_tr_b16 a[%d:%d], v%d offset:%d' % (b + 2 * j, b + 2 * j + 1, va[u], s * 4096 + 2048 * j), tag=('w', self.uid)))
        return res

ACC, PK = 128, 160
def acc(u, t): return ACC + 8 * u + 4 * t
def bfrag(s, t): return vr(16 * s + 4 * t) if s < 8 else ar(HF + 8 * (s - 8) + 4 * t)

def proj_dma():
    r = []
    for i in range(8):
        if i % 4 == 0: r.append(I('s_add_u32 m0, s%d, %d' % (sM0A, (i // 4) * 4096)))
        r.append(I('buffer_load_dwordx4 v%d, s[%d:%d], s%d offen offset:%d lds' % (vDO[i], SWO, SWO + 3, sSOA, (i % 4) * 1024)))
    r.append(I('s_mov_b32 m0, s%d' % sM0B))
    for i in range(4):
        r.append(I('buffer_load_dwordx4 v%d, s[%d:%d], s%d offen offset:%d lds' % (vDO[8 + i], SWD, SWD + 3, sSOB, i * 1024)))
    return r

def proj_segment(eng, buf, pre_tags, streams, pending):
    S_ = 24; sg0 = eng.sigma
    mf = []; rdS = Stream('wreads', prio=5)
    tags = {i: pre_tags[i] for i in range(PRE)}
    for slot in range(S_):
        if slot + PRE < S_:
            r = eng.reads(buf, slot + PRE, sg0 + slot + PRE)
            tags[slot + PRE] = [x.tag for x in r]
            for q, x in enumerate(r): rdS.add(x, e=4 * slot + q - 1 if (slot or q) else -1, d=4 * slot + q)
    for slot in range(S_):
        kp, u = divmod(slot, 4)
        for t in range(2):
            for hf in range(2):
                s = 2 * kp + hf
                b = WR + 8 * ((sg0 + slot) % 4) + 4 * hf
                d = vr(acc(u, t))
                need = ()
                if t == 0 and hf == 0:
                    need = list(tags[slot])
                    if slot % 2 == 0 and slot + 1 < S_ and slot + 1 >= PRE: need += tags[slot + 1]
                mf.append(I(mfma(d, ar(b), bfrag(s, t), '0' if s == 0 else d), need=need))
    n = len(mf)
    bar_gap = 4 * (S_ - PRE) + 3
    bs = Stream('bar', prio=9)
    bs.add(I('s_waitcnt vmcnt(0) lgkmcnt(0)'), e=bar_gap, d=bar_gap)
    bs.add(I('s_barrier'), e=bar_gap, d=bar_gap)
    nxt = []; k = 0
    for ps in range(PRE):
        r = eng.reads(1 - buf, ps, sg0 + S_ + ps)
        nxt.append([x.tag for x in r])
        for q, x in enumerate(r):
            e = bar_gap + 1 + k // 2 if ps < 2 else 4 * (S_ - 1) + q - 1
            k += 1
            e = min(max(e, bar_gap + 1), n - 1)
            bs.add(x, e=e, d=e)
    eng.sigma = sg0 + S_
    seq = pack(mf, [rdS, bs] + streams, budget=8)
    seq, pend = insert_lgkm_waits(seq, pending)
    return seq, nxt, pend

def proj_epilogue(n):
    fin = lambda u, t: n - 16 + 4 * u + 2 * t + 1
    ovw = lambda u, t: n + 4 * u + 2 * t
    ops = []
    fi = 0
    for p_ in range(2):
        for t in range(2):
            dst = PK + 4 * fi; fi += 1
            for half in range(2):
                u = 2 * p_ + half; a0 = acc(u, t); e = fin(u, t) + 6; d = ovw(u, t) - 1
                ops.append((e, d, I('v_cvt_pk_bf16_f32 v%d, v%d, v%d' % (dst + 2 * half, a0, a0 + 1))))
                ops.append((e, d, I('v_cvt_pk_bf16_f32 v%d, v%d, v%d' % (dst + 2 * half + 1, a0 + 2, a0 + 3))))
            ops.append((e, n + 40, I('buffer_store_dwordx4 %s, v%d, s[%d:%d], s%d offen' % (vr(dst), vST[2 * p_ + t], SWS, SWS + 3, sOUT))))
    cur = Stream('epi', prio=4); carry = []; last = -1
    for (e, d, ins) in ops:
        last = max(last, e)
        if last <= n - 1: cur.add(ins, e=last, d=d)
        else: carry.append((last - n, d - n, ins))
    return cur, carry

def spread(name, ins, lo, hi, dl, prio=3):
    s = Stream(name, prio=prio)
    for i, x in enumerate(ins): s.add(x, e=int(lo + (hi - lo) * i / len(ins)), d=dl)
    return s

def half_iter(par, ka_in, ka_out):
    sb_next = 1 - par
    kprev = vPRV if par == 0 else vCUR
    koff = 32768 if par == 0 else 0
    kb_reads = [rd(ar(KB_ + 4 * s), kprev, koff + (8 + s) * 1024) for s in range(8)]
    mfA = qk_mfmas(sb_next, [x.tag for x in ka_in], [x.tag for x in kb_reads])
    sK = Stream('kb', prio=6)
    for s, x in enumerate(kb_reads): sK.add(x, e=s - 1, d=s + 2)
    p1_next, _ = softmax_parts(sb_next)
    _, p2 = softmax_parts(par)
    sS = Stream('soft', prio=4)
    for i, x in enumerate(p2): sS.add(x, e=int(i * 27.0 / len(p2)), d=30)
    voff = 16384 if par == 0 else 49152
    v_reads = [rd(ar(VR + 4 * (dt % 8)), vCUR, voff + dt * 1024) for dt in range(16)]
    sV = Stream('vpre', prio=7)
    if par == 0:
        sV.add(I('s_waitcnt vmcnt(0) lgkmcnt(0)'), e=22, d=22)
        sV.add(I('s_barrier'), e=22, d=22)
        if STAMP:
            for x in stamp_ops(): sV.add(x, e=22, d=22)
    for dt in range(6): sV.add(v_reads[dt], e=24 + dt, d=min(31, 25 + dt))
    streamsA = [sK, sS, sV]
    mfB = pv_mfmas(par, [x.tag for x in v_reads])
    sV2 = Stream('v', prio=7)
    for dt in range(6, 16):
        e = -1 + (dt - 6) if dt < 8 else 2 * (dt - 8) + 2
        sV2.add(v_reads[dt], e=e, d=max(e, 2 * dt - 7))
    sKa = Stream('ka', prio=5)
    for s, x in enumerate(ka_out): sKa.add(x, e=14 + 2 * s, d=17 + 2 * s)
    sM = Stream('mask', prio=8)
    lab = 'L_k2_mask%d' % sb_next
    for x in l_update(): sM.add(x, e=0, d=1)
    sM.add(I('s_sub_i32 s%d, s%d, 1' % (sMK, sMK)), e=1, d=2)
    sM.add(I('s_cmp_le_i32 s%d, 0' % sMK), e=2, d=2)
    sM.add(I('s_cbranch_scc1 %s' % lab), e=2, d=2)
    sM.add(I(lab + '_back:'), e=2, d=2)
    for i, x in enumerate(p1_next): sM.add(x, e=3 + int(i * 26.0 / len(p1_next)), d=30)
    return mfA, streamsA, mfB, [sV2, sKa, sM]

def finalize_plain(p, sc):
    for s in range(8):
        for qt in range(2):
            a, b = Oacc(2 * s, qt), Oacc(2 * s + 1, qt)
            for i in range(4): p('v_mul_f32 v%d, v%d, v%d' % (a + i, a + i, sc[qt]))
            for i in range(4): p('v_mul_f32 v%d, v%d, v%d' % (b + i, b + i, sc[qt]))
            p('v_cvt_pk_bf16_f32 v%d, v%d, v%d' % (a, a, a + 1))
            p('v_cvt_pk_bf16_f32 v%d, v%d, v%d' % (a + 1, a + 2, a + 3))
            p('v_cvt_pk_bf16_f32 v%d, v%d, v%d' % (a + 2, b, b + 1))
            p('v_cvt_pk_bf16_f32 v%d, v%d, v%d' % (a + 3, b + 2, b + 3))

def build():
    p = Prog()
    p('%s:' % NAME)
    p('s_cmp_ge_u32 s2, 256')
    p('s_cbranch_scc1 L_k2_end')
    p('s_load_dwordx16 s[%d:%d], s[0:1], 0' % (sKPTR, sKPTR + 15))
    p('s_load_dwordx8 s[%d:%d], s[0:1], 64' % (sKPTR + 16, sKPTR + 23))
    p('s_load_dwordx4 s[%d:%d], s[0:1], 96' % (sKPTR + 24, sKPTR + 27))
    p('s_getpc_b64 s[92:93]')
    p('s_mov_b32 s94, 0x8000')
    p('s_mov_b32 s95, 0x20000')
    p('v_lshlrev_b32 v3, 7, v0')
    p('buffer_load_dword v%d, v3, s[92:95], 0 offen' % vDUM)
    p('v_lshrrev_b32 v3, 6, v0')
    p('v_and_b32 v%d, 63, v0' % vLANE)
    p('v_readfirstlane_b32 s%d, v3' % sW)
    p('s_and_b32 s3, s2, 7')
    p('s_lshr_b32 s%d, s2, 3' % sT0)
    p('s_and_b32 s%d, s%d, 1' % (sT1, sT0))
    p('s_lshl_b32 s3, s3, 1')
    p('s_add_u32 s%d, s3, s%d' % (sH, sT1))
    p('s_lshr_b32 s%d, s%d, 1' % (sT0, sT0))
    p('s_lshr_b32 s%d, s%d, 3' % (sROLE, sT0))
    p('s_and_b32 s%d, s%d, 7' % (sJ, sT0))
    p('v_lshlrev_b32 v%d, 4, v%d' % (vL16, vLANE))
    p('s_lshl_b32 s%d, s%d, 12' % (sM0, sW))
    p('v_add_u32 v%d, s%d, v%d' % (vDK, sM0, vL16))
    p('s_lshl_b32 s%d, s%d, 13' % (sM0W, sW))
    p('s_lshl_b32 s%d, s%d, 21' % (sKVB, sH))
    p('v_and_b32 v%d, 15, v%d' % (vT[0], vLANE))
    p('v_lshrrev_b32 v%d, 4, v%d' % (vT[1], vLANE))
    p('v_lshlrev_b32 v%d, 2, v%d' % (vT[2], vT[1]))
    p('v_sub_u32 v%d, v%d, v%d' % (vRG, vT[0], vT[2]))
    p('v_mov_b32 v%d, 0xff800000' % vNINF)
    p('s_mov_b32 s%d, %s' % (sTHR, hexf(2.0 ** 20)))
    p('v_bfe_u32 v%d, v%d, 2, 2' % (vT[2], vLANE))
    p('v_and_b32 v%d, 3, v%d' % (vT[3], vLANE))
    p('v_lshl_add_u32 v%d, v%d, 2, v%d' % (vT[4], vT[1], vT[2]))
    p('v_bfe_u32 v%d, v%d, 1, 2' % (vT[5], vT[4]))
    p('v_bfe_u32 v%d, v%d, 3, 1' % (vT[6], vT[4]))
    p('v_lshlrev_b32 v%d, 1, v%d' % (vT[6], vT[6]))
    p('v_xor_b32 v%d, v%d, v%d' % (vT[5], vT[5], vT[6]))
    p('v_lshlrev_b32 v%d, 7, v%d' % (vT[4], vT[4]))
    p('v_lshl_add_u32 v%d, v%d, 3, v%d' % (vT[4], vT[3], vT[4]))
    for v in range(4):
        p('v_xor_b32 v%d, %d, v%d' % (vT[6], v, vT[5]))
        p('v_lshl_add_u32 v%d, v%d, 5, v%d' % (vVA[v], vT[6], vT[4]))
        p('v_add_u32 v%d, 0x10000, v%d' % (vVB[v], vVA[v]))
    p('v_lshrrev_b32 v%d, 3, v%d' % (vT[0], vLANE))
    p('v_mul_u32_u24 v%d, 896, v%d' % (vT[1], vT[0]))
    p('v_bfe_u32 v%d, v%d, 4, 2' % (vT[2], vLANE))
    p('v_bfe_u32 v%d, v%d, 1, 2' % (vT[3], vLANE))
    p('v_xor_b32 v%d, v%d, v%d' % (vT[2], vT[2], vT[3]))
    p('v_and_b32 v%d, 1, v%d' % (vT[3], vLANE))
    p('v_lshl_add_u32 v%d, v%d, 4, v%d' % (vT[1], vT[3], vT[1]))
    p('v_lshl_add_u32 v%d, v%d, 5, v%d' % (vT[4], vT[2], vT[1]))
    p('v_xor_b32 v%d, 2, v%d' % (vT[2], vT[2]))
    p('v_lshl_add_u32 v%d, v%d, 5, v%d' % (vT[5], vT[2], vT[1]))
    p('s_mul_i32 s%d, s%d, %d' % (sT0, sW, 64 * 896))
    p('s_mul_i32 s%d, s%d, %d' % (sT1, sW, 32 * 896))
    for i in range(8):
        p('v_add_u32 v%d, 0x%x, v%d' % (vDO[i], 8 * i * 896 - (i % 4) * 1024, vT[4 + i % 2]))
        p('v_add_u32 v%d, s%d, v%d' % (vDO[i], sT0, vDO[i]))
    for i in range(4):
        p('v_add_u32 v%d, 0x%x, v%d' % (vDO[8 + i], 8 * i * 896 - i * 1024, vT[4 + i % 2]))
        p('v_add_u32 v%d, s%d, v%d' % (vDO[8 + i], sT1, vDO[8 + i]))
    for i in range(4): p('v_add_u32 v%d, 0x%x, v%d' % (vST[i], (i // 2) * 32768 + (i % 2) * 16384, vL16))
    p('s_lshl_b32 s%d, s%d, 3' % (sT0, sH))
    p('s_add_u32 s%d, s%d, s%d' % (sT0, sT0, sJ))
    p('s_lshl_b32 s%d, s%d, 7' % (sFL, sT0))
    p('s_add_u32 s%d, s%d, 0x%x' % (sFL, sFL, WS_FL))
    p('s_lshl_b32 s%d, s%d, 2' % (sT0, sT0))
    p('s_add_u32 s%d, s%d, s%d' % (sT0, sT0, sW))
    p('s_mul_i32 s%d, s%d, %d' % (sPM, sT0, 17 * 1024))
    p('s_add_u32 s%d, s%d, 0x%x' % (sPM, sPM, WS_PM))
    p('s_waitcnt lgkmcnt(0)')
    kp = lambda n: sKPTR + KA[n] // 4
    srd(p, SWS, kp('ws'), SZ['ws']); srd(p, SWO, kp('wo'), SZ['wo']); srd(p, SWD, kp('wd'), SZ['wd'])
    if STAMP:
        p('s_lshl_b32 s94, s2, 2')
        p('s_add_u32 s94, s94, s%d' % sW)
        p('s_lshl_b32 s94, s94, 8')
        p('s_add_u32 s94, s94, 0x%x' % WS_DBG)
        p('s_memrealtime s[92:93]')
        p('s_waitcnt lgkmcnt(0)')
        p(stamp_ops())
        p('s_waitcnt lgkmcnt(0)')
    p('s_sub_u32 s%d, 15, s%d' % (sB, sJ))
    p('s_lshl_b32 s%d, s%d, 2' % (sT0, sJ))
    p('s_sub_u32 s%d, 30, s%d' % (sT0, sT0))
    p('s_cmp_eq_u32 s%d, 0' % sROLE)
    p('s_cselect_b32 s%d, 34, 0' % sKB0)
    p('s_cselect_b32 s%d, s%d, 34' % (sN, sT0))
    p('s_mov_b32 s%d, 0' % sPHASE)
    p('L_k2_seg:')
    p('s_lshl_b32 s%d, s%d, 2' % (sRB, sB))
    p('s_add_u32 s%d, s%d, s%d' % (sRB, sRB, sW))
    p('s_sub_u32 s%d, s%d, s%d' % (sMK, sRB, sKB0))
    p('s_lshl_b32 s%d, s%d, 15' % (sKB, sKB0))
    p('s_add_u32 s%d, s%d, s%d' % (sKB, sKB, sKVB))
    p(piece(65536, sKB, 0))
    p(piece(65536 + 32768, sKB, 32768))
    p(piece(0, sKB, 65536)); p(piece(16384, sKB, 16384)); p(piece(32768, sKB, 98304)); p(piece(49152, sKB, 49152))
    p('s_lshl_b32 s%d, s%d, 6' % (sT0, sH))
    p('s_add_u32 s%d, s%d, s%d' % (sT0, sT0, sRB))
    p('s_lshl_b32 s%d, s%d, 14' % (sT0, sT0))
    p('s_add_u32 s%d, s%d, 0x%x' % (sT0, sT0, WS_Q))
    for q4 in range(4):
        for i in range(4):
            p('buffer_load_dwordx4 %s, v%d, s[%d:%d], s%d offen offset:%d' % (ar(QF + 16 * q4 + 4 * i), vL16, SWS, SWS + 3, sT0, i * 1024))
        if q4 < 3: p('s_add_u32 s%d, s%d, 4096' % (sT0, sT0))
    p('v_and_b32 v%d, 15, v%d' % (vT[0], vLANE))
    p('v_lshlrev_b32 v%d, 2, v%d' % (vT[0], vT[0]))
    p('s_lshl_b32 s%d, s%d, 7' % (sT0, sRB))
    p('s_add_u32 s%d, s%d, 0x%x' % (sT0, sT0, WS_G))
    for qt in range(2): p('buffer_load_dword v%d, v%d, s[%d:%d], s%d offen offset:%d' % (vG[qt], vT[0], SWS, SWS + 3, sT0, 64 * qt))
    p('s_lshl_b32 s%d, s%d, 4' % (sT0, sRB))
    p('s_add_u32 s%d, s%d, s%d' % (sT0, sT0, sH))
    p('s_lshl_b32 s%d, s%d, 13' % (sT0, sT0))
    p('s_add_u32 s%d, s%d, 0x%x' % (sT0, sT0, WS_H))
    for q4 in range(2):
        for i in range(4):
            p('buffer_load_dwordx4 %s, v%d, s[%d:%d], s%d offen offset:%d' % (ar(HF + 16 * q4 + 4 * i), vL16, SWS, SWS + 3, sT0, i * 1024))
        if q4 < 1: p('s_add_u32 s%d, s%d, 4096' % (sT0, sT0))
    for r in range(128): p('v_mov_b32 v%d, 0' % (O0 + r))
    for r in range(8): p('v_mov_b32 v%d, 0' % (NEGM + r))
    for qt in range(2):
        p('v_mov_b32 v%d, 0' % vL[qt]); p('v_mov_b32 v%d, 0' % vM[qt])
    p('v_mov_b32 v%d, v%d' % (vCUR, vL16))
    p('v_add_u32 v%d, 0x10000, v%d' % (vPRV, vL16))
    p('s_add_u32 s%d, s%d, 0x10000' % (sM0L, sM0))
    p('s_lshr_b32 s%d, s%d, 1' % (sCNT, sN))
    p('s_waitcnt vmcnt(0)')
    p('s_barrier')
    p([rd(ar(KA_ + 4 * s), vPRV, s * 1024) for s in range(8)])
    p([rd(ar(KB_ + 4 * s), vPRV, (8 + s) * 1024) for s in range(8)])
    p('s_waitcnt lgkmcnt(0)')
    p([I(x.t) for x in qk_mfmas(0, None, None)])
    p([rd(ar(KA_ + 4 * s), vPRV, 32768 + s * 1024) for s in range(8)])
    p('s_cmp_le_i32 s%d, 0' % sMK)
    p('s_cbranch_scc1 L_k2_maskp')
    p('L_k2_maskp_back:')
    p('s_mov_b32 s%d, %s' % (sCLAMP, hexf(-1e30)))
    p('s_mov_b32 s%d, 1' % sT3)
    p('s_branch L_k2_slow0')
    p('L_k2_pro_back:')
    p('s_mov_b32 s%d, 0' % sCLAMP)
    p('s_mov_b32 s%d, 0' % sT3)
    p('s_waitcnt lgkmcnt(0)')
    if STAMP: p(stamp_ops())
    ka0 = [rd(ar(KA_ + 4 * s), vCUR, s * 1024) for s in range(8)]
    ka1 = [rd(ar(KA_ + 4 * s), vCUR, 32768 + s * 1024) for s in range(8)]
    mfA0, stA0, mfB0, stB0 = half_iter(0, ka1, ka0)
    mfA1, stA1, mfB1, stB1 = half_iter(1, ka0, ka1)
    dm = [I('s_add_u32 s%d, s%d, 65536' % (sKB, sKB)), I('s_cmp_eq_u32 s%d, 1' % sCNT), I('s_cselect_b32 s%d, 0x10000000, s%d' % (sT2, sKB))]
    dm += piece(0, sT2, 65536, sM0L) + piece(16384, sT2, 16384, sM0L)
    dm2 = piece(32768, sT2, 98304, sM0L) + piece(49152, sT2, 49152, sM0L)
    head = dm[:3]
    dB = Stream('dma', prio=3)
    for x in head: dB.add(x, e=3, d=6)
    for i, x in enumerate(dm[3:]): dB.add(x, e=5 + 2 * i, d=31)
    dA = spread('dma', dm2, 0, 22, 28)
    body = []
    body += pack(mfA0, stA0, budget=8)
    body += [I('s_cbranch_vccnz L_k2_slow0'), I('L_k2_slow0_back:')]
    body += pack(mfB0, stB0 + [dB], budget=8)
    body += pack(mfA1, stA1 + [dA], budget=8)
    body += [I('s_cbranch_vccnz L_k2_slow1'), I('L_k2_slow1_back:')]
    body += pack(mfB1, stB1, budget=8)
    body += [I('v_xor_b32 v%d, 0x10000, v%d' % (vCUR, vCUR)), I('v_xor_b32 v%d, 0x10000, v%d' % (vPRV, vPRV)),
             I('s_xor_b32 s%d, s%d, 0x10000' % (sM0L, sM0L)), I('s_sub_u32 s%d, s%d, 1' % (sCNT, sCNT)), I('s_cmp_lg_u32 s%d, 0' % sCNT)]
    _, pend = insert_lgkm_waits(body, [])
    seq, pend2 = insert_lgkm_waits(body, pend)
    assert pend2 == pend[len(pend) - len(pend2):], (pend, pend2)
    p('L_k2_loop:')
    p(seq)
    p('s_cbranch_scc1 L_k2_loop')
    p('s_waitcnt vmcnt(0) lgkmcnt(0)')
    p('s_barrier')
    if STAMP: p(stamp_ops())
    allreduce(p, 'v_add_f32', vL, [vT[0], vT[1]])
    p('s_cmp_eq_u32 s%d, 1' % sROLE)
    p('s_cbranch_scc1 L_k2_fin')
    p('s_cmp_eq_u32 s%d, 1' % sPHASE)
    p('s_cbranch_scc1 L_k2_fin')
    for qt in range(2): p('v_rcp_f32 v%d, v%d' % (vT[2 + qt], vL[qt]))
    for qt in range(2): p('v_cmp_lt_f32 s[%d:%d], 0, v%d' % (sMSK + 2 * qt, sMSK + 2 * qt + 1, vL[qt]))
    p('s_nop 1')
    for qt in range(2): p('v_cndmask_b32 v%d, 0, v%d, s[%d:%d]' % (vT[2 + qt], vT[2 + qt], sMSK + 2 * qt, sMSK + 2 * qt + 1))
    finalize_plain(p, [vT[2], vT[3]])
    p('s_mov_b32 s%d, s%d' % (sT0, sPM))
    for s in range(8):
        for qt in range(2):
            k = 2 * s + qt
            p('buffer_store_dwordx4 %s, v%d, s[%d:%d], s%d offen offset:%d sc1' % (vr(16 * s + 4 * qt), vL16, SWS, SWS + 3, sT0, (k % 4) * 1024))
            if k % 4 == 3: p('s_add_u32 s%d, s%d, 4096' % (sT0, sT0))
    st = vT[9]
    assert st % 2 == 0
    p('v_mov_b32 v%d, v%d' % (st, vM[0])); p('v_mov_b32 v%d, v%d' % (st + 1, vM[1]))
    p('v_mov_b32 v%d, v%d' % (st + 2, vL[0])); p('v_mov_b32 v%d, v%d' % (st + 3, vL[1]))
    p('buffer_store_dwordx4 %s, v%d, s[%d:%d], s%d offen sc1' % (vr(st), vL16, SWS, SWS + 3, sT0))
    p('s_waitcnt vmcnt(0)')
    p('s_barrier')
    p('s_cmp_eq_u32 s%d, 0' % sW)
    p('s_cbranch_scc0 L_k2_noflag')
    p('v_mov_b32 v%d, 1' % vT[0])
    p('buffer_store_dword v%d, off, s[%d:%d], s%d sc1' % (vT[0], SWS, SWS + 3, sFL))
    p('L_k2_noflag:')
    p('s_mov_b32 s%d, s%d' % (sB, sJ))
    p('s_mov_b32 s%d, 0' % sKB0)
    p('s_add_u32 s%d, s%d, 1' % (sN, sJ))
    p('s_lshl_b32 s%d, s%d, 2' % (sN, sN))
    p('s_mov_b32 s%d, 1' % sPHASE)
    p('s_branch L_k2_seg')
    p('L_k2_fin:')
    p('s_mul_i32 s%d, s%d, %d' % (sSOA, sH, 256 * 896))
    p('s_mul_i32 s%d, s%d, %d' % (sSOB, sH, 112 * 896))
    p('s_mov_b32 s%d, s%d' % (sM0A, sM0W))
    p('s_add_u32 s%d, s%d, 32768' % (sM0B, sM0))
    p('s_cmp_eq_u32 s%d, 1' % sROLE)
    p('s_cbranch_scc1 L_k2_merge')
    p(proj_dma())
    for qt in range(2): p('v_rcp_f32 v%d, v%d' % (vT[2 + qt], vL[qt]))
    p('s_nop 0')
    for qt in range(2): p('v_mul_f32 v%d, v%d, v%d' % (vT[2 + qt], vT[2 + qt], vG[qt]))
    finalize_plain(p, [vT[2], vT[3]])
    p('s_branch L_k2_proj')
    p('L_k2_merge:')
    p('s_mov_b32 s%d, 0x400000' % sT1)
    p('L_k2_poll:')
    p('buffer_load_dword v%d, off, s[%d:%d], s%d sc1' % (vT[0], SWS, SWS + 3, sFL))
    p('s_waitcnt vmcnt(0)')
    p('v_readfirstlane_b32 s%d, v%d' % (sT0, vT[0]))
    p('s_sub_u32 s%d, s%d, 1' % (sT1, sT1))
    p('s_cmp_eq_u32 s%d, 0' % sT1)
    p('s_cbranch_scc1 L_k2_polled')
    p('s_cmp_eq_u32 s%d, 1' % sT0)
    p('s_cbranch_scc1 L_k2_polled')
    p('s_sleep 8')
    p('s_branch L_k2_poll')
    p('L_k2_polled:')
    p('s_mov_b32 s%d, s%d' % (sT0, sPM))
    for s in range(8):
        for qt in range(2):
            k = 2 * s + qt
            p('buffer_load_dwordx4 %s, v%d, s[%d:%d], s%d offen offset:%d sc1' % (vr(128 + 4 * k), vL16, SWS, SWS + 3, sT0, (k % 4) * 1024))
            if k % 4 == 3: p('s_add_u32 s%d, s%d, 4096' % (sT0, sT0))
    p('buffer_load_dwordx4 %s, v%d, s[%d:%d], s%d offen sc1' % (vr(st), vL16, SWS, SWS + 3, sT0))
    p(proj_dma())
    p('s_waitcnt vmcnt(12)')
    mf_, w1, w2, lf = [vT[0], vT[1]], [vT[2], vT[3]], [vT[4], vT[5]], [vT[6], vT[7]]
    for qt in range(2):
        p('v_max_f32 v%d, v%d, v%d' % (mf_[qt], vM[qt], st + qt))
        p('v_sub_f32 v%d, v%d, v%d' % (w1[qt], vM[qt], mf_[qt]))
        p('v_sub_f32 v%d, v%d, v%d' % (w2[qt], st + qt, mf_[qt]))
    for qt in range(2):
        p('v_exp_f32 v%d, v%d' % (w1[qt], w1[qt])); p('v_exp_f32 v%d, v%d' % (w2[qt], w2[qt]))
    p('s_nop 0')
    for qt in range(2):
        p('v_mul_f32 v%d, v%d, v%d' % (w2[qt], w2[qt], st + 2 + qt))
        p('v_fma_f32 v%d, v%d, v%d, v%d' % (lf[qt], w1[qt], vL[qt], w2[qt]))
    for qt in range(2): p('v_rcp_f32 v%d, v%d' % (lf[qt], lf[qt]))
    p('s_nop 0')
    for qt in range(2):
        p('v_mul_f32 v%d, v%d, v%d' % (lf[qt], lf[qt], vG[qt]))
        p('v_mul_f32 v%d, v%d, v%d' % (w1[qt], w1[qt], lf[qt]))
        p('v_mul_f32 v%d, v%d, v%d' % (w2[qt], w2[qt], lf[qt]))
    for s in range(8):
        for qt in range(2):
            src = 128 + 4 * (2 * s + qt)
            a, b = Oacc(2 * s, qt), Oacc(2 * s + 1, qt)
            regs = [a, a + 1, a + 2, a + 3, b, b + 1, b + 2, b + 3]
            for k in range(4):
                lo, hi = regs[2 * k], regs[2 * k + 1]
                p('v_lshlrev_b32 v%d, 16, v%d' % (vT[8], src + k))
                p('v_and_b32 v%d, 0xffff0000, v%d' % (vT[13], src + k))
                p('v_mul_f32 v%d, v%d, v%d' % (lo, lo, w1[qt]))
                p('v_mul_f32 v%d, v%d, v%d' % (hi, hi, w1[qt]))
                p('v_fmac_f32 v%d, v%d, v%d' % (lo, vT[8], w2[qt]))
                p('v_fmac_f32 v%d, v%d, v%d' % (hi, vT[13], w2[qt]))
            p('v_cvt_pk_bf16_f32 v%d, v%d, v%d' % (a, a, a + 1))
            p('v_cvt_pk_bf16_f32 v%d, v%d, v%d' % (a + 1, a + 2, a + 3))
            p('v_cvt_pk_bf16_f32 v%d, v%d, v%d' % (a + 2, b, b + 1))
            p('v_cvt_pk_bf16_f32 v%d, v%d, v%d' % (a + 3, b + 2, b + 3))
    p('L_k2_proj:')
    p('s_mul_i32 s%d, s%d, %d' % (sPO, sRB, 28 * 16384))
    p('s_lshl_b32 s%d, s%d, 10' % (sT0, sH))
    p('s_add_u32 s%d, s%d, s%d' % (sPO, sPO, sT0))
    p('s_add_u32 s%d, s%d, 0x%x' % (sPO, sPO, WS_PO))
    p('s_mov_b32 s%d, 0x10000000' % sOUT)
    p('s_movk_i32 s%d, 7' % sCNT)
    p('s_waitcnt vmcnt(0)')
    p('s_barrier')
    if STAMP: p(stamp_ops())
    eng = Eng()
    pre = []
    for ps in range(PRE):
        r = eng.reads(0, ps, ps); pre.append([x.tag for x in r]); p(r)
    flat = [t for g_ in pre for t in g_]
    p('L_k2_ploop:')
    ep, cout = proj_epilogue(96)
    cin = Stream('carry', prio=6); cin.items = list(cout)
    d = [I('s_add_u32 s%d, s%d, 128' % (sSOA, sSOA)), I('s_add_u32 s%d, s%d, 128' % (sSOB, sSOB)), I('s_cmp_eq_u32 s%d, 1' % sCNT),
         I('s_cselect_b32 s%d, 0x10000000, s%d' % (sSOA, sSOA)), I('s_cselect_b32 s%d, 0x10000000, s%d' % (sSOB, sSOB)),
         I('s_xor_b32 s%d, s%d, 0x10000' % (sM0A, sM0A)), I('s_xor_b32 s%d, s%d, 0x10000' % (sM0B, sM0B))]
    ds_ = Stream('dma', prio=3)
    for x in d: ds_.add(x, e=0, d=8)
    for i, x in enumerate(proj_dma()): ds_.add(x, e=6 + 3 * i, d=60)
    so = Stream('sout', prio=4)
    so.add(I('s_mov_b32 s%d, s%d' % (sOUT, sPO)), e=64, d=80)
    so.add(I('s_add_u32 s%d, s%d, 65536' % (sPO, sPO)), e=64, d=80)
    seq, nxt, pend = proj_segment(eng, 0, pre, [ds_, cin, so, ep], flat)
    p(seq)
    for v in range(4):
        p('v_xor_b32 v%d, 0x10000, v%d' % (vVA[v], vVA[v])); p('v_xor_b32 v%d, 0x10000, v%d' % (vVB[v], vVB[v]))
    p('s_sub_u32 s%d, s%d, 1' % (sCNT, sCNT))
    p('s_cmp_lg_u32 s%d, 0' % sCNT)
    p('s_cbranch_scc1 L_k2_ploop')
    p('s_nop 7')
    p([x for (_, _, x) in cout])
    if STAMP:
        p('s_waitcnt vmcnt(0) lgkmcnt(0)')
        p(stamp_ops()); p('s_waitcnt lgkmcnt(0)'); p(stamp_ops())
        p('s_memrealtime s[92:93]'); p('s_waitcnt lgkmcnt(0)'); p(stamp_ops()[:3])
    p('s_endpgm')
    mask_block(p, 0, 'L_k2_maskp', 'L_k2_maskp_back')
    mask_block(p, 0, 'L_k2_mask0', 'L_k2_mask0_back')
    mask_block(p, 1, 'L_k2_mask1', 'L_k2_mask1_back')
    slow_path(p, 0, 'L_k2_slow0')
    slow_path(p, 1, 'L_k2_slow1')
    p('L_k2_end:')
    p('s_endpgm')
    return p
```

```python
from fw import *
from common import *
NAME = 'k3_reduce_kernel'
GRID = 64 * 28 // 4
VGPR = 80
def build():
    p = Prog()
    p('%s:' % NAME)
    p('s_cmp_ge_u32 s2, %d' % GRID)
    p('s_cbranch_scc1 L_k3_end')
    p('s_load_dwordx2 s[4:5], s[0:1], %d' % KA['ws'])
    p('s_load_dwordx2 s[6:7], s[0:1], %d' % KA['out'])
    p('v_lshrrev_b32 v1, 6, v0')
    p('v_and_b32 v2, 63, v0')
    p('v_readfirstlane_b32 s3, v1')
    p('s_lshl_b32 s16, s2, 2')
    p('s_add_u32 s16, s16, s3')
    p('v_lshlrev_b32 v3, 4, v2')
    p('s_lshl_b32 s17, s16, 14')
    p('s_add_u32 s17, s17, 0x%x' % WS_PO)
    p('s_waitcnt lgkmcnt(0)')
    p('s_mov_b32 s8, s4'); p('s_and_b32 s9, s5, 0xffff'); p('s_mov_b32 s10, 0x%x' % SZ['ws']); p('s_mov_b32 s11, 0x20000')
    p('s_mov_b32 s12, s6'); p('s_and_b32 s13, s7, 0xffff'); p('s_mov_b32 s14, 0x%x' % SZ['out']); p('s_mov_b32 s15, 0x20000')
    for h in range(16):
        p('buffer_load_dwordx4 v[%d:%d], v3, s[8:11], s17 offen offset:%d' % (16 + 4 * h, 19 + 4 * h, (h % 4) * 1024))
        if h % 4 == 3 and h < 15: p('s_add_u32 s17, s17, 4096')
    p('s_mul_i32 s18, s16, 2341')
    p('s_lshr_b32 s18, s18, 16')
    p('s_mul_i32 s19, s18, 28')
    p('s_sub_u32 s19, s16, s19')
    p('s_and_b32 s20, s19, 1')
    p('s_lshr_b32 s21, s19, 1')
    p('s_lshl_b32 s22, s18, 5')
    p('s_lshl_b32 s20, s20, 4')
    p('s_add_u32 s22, s22, s20')
    p('s_mul_i32 s22, s22, 896')
    p('s_lshl_b32 s21, s21, 6')
    p('s_add_u32 s22, s22, s21')
    p('v_and_b32 v4, 15, v2')
    p('v_mul_u32_u24 v4, 896, v4')
    p('v_lshrrev_b32 v5, 4, v2')
    p('v_lshl_add_u32 v4, v5, 3, v4')
    for h in range(16):
        p('s_waitcnt vmcnt(%d)' % (15 - h))
        for k in range(4):
            src = 16 + 4 * h + k
            if h == 0:
                p('v_lshlrev_b32 v%d, 16, v%d' % (8 + 2 * k, src))
                p('v_and_b32 v%d, 0xffff0000, v%d' % (9 + 2 * k, src))
            else:
                p('v_lshlrev_b32 v6, 16, v%d' % src)
                p('v_and_b32 v7, 0xffff0000, v%d' % src)
                p('v_add_f32 v%d, v%d, v6' % (8 + 2 * k, 8 + 2 * k))
                p('v_add_f32 v%d, v%d, v7' % (9 + 2 * k, 9 + 2 * k))
    for k in range(4): p('v_cvt_pk_bf16_f32 v%d, v%d, v%d' % (16 + k, 8 + 2 * k, 9 + 2 * k))
    p('buffer_store_dwordx2 v[16:17], v4, s[12:15], s22 offen')
    p('buffer_store_dwordx2 v[18:19], v4, s[12:15], s22 offen offset:32')
    p('L_k3_end:')
    p('s_endpgm')
    return p
```

```python
import sys, importlib
from fw import *
HEAD = open('gated_mix__compressed_kv_cla__geglu_ffn__prompt.s.ref').read().split('; Override launch')[0]

def desc(name, vgpr, accum, sgpr=102):
    return """.amdhsa_kernel %s
  .amdhsa_next_free_vgpr %d
  .amdhsa_next_free_sgpr %d
  .amdhsa_accum_offset %d
  .amdhsa_group_segment_fixed_size 0
  .amdhsa_kernarg_size 112
  .amdhsa_user_sgpr_count 2
  .amdhsa_user_sgpr_kernarg_segment_ptr 1
  .amdhsa_system_sgpr_workgroup_id_x 1
.end_amdhsa_kernel
""" % (name, vgpr, sgpr, accum)

def make(kernels, path):
    out = HEAD
    for (name, p, grid, block, lds, vgpr, accum) in kernels:
        out += '; @launch kernel=%s grid=(%d,1,1) block=(%d,1,1) lds=%d\n' % (name, grid, block, lds)
    out += '.amdgcn_target "amdgcn-amd-amdhsa--gfx950"\n.text\n'
    nerr = 0
    for (name, p, *_r) in kernels:
        p.seq = fix_m0(p.seq)
        errs = lint(p.seq, name)
        for e in errs[:20]: print(e)
        nerr += len(errs)
        out += '.globl %s\n.p2align 8\n.type %s,@function\n' % (name, name)
        out += p.text()
    out += '.section .rodata,"a"\n'
    for (name, p, grid, block, lds, vgpr, accum) in kernels:
        out += '.p2align 6\n' + desc(name, vgpr, accum)
    open(path, 'w').write(out)
    print('%s: %d bytes, %d instructions, %d lint errors' % (path, len(out), sum(len(k[1].seq) for k in kernels), nerr))
    return nerr

if __name__ == '__main__':
    which = sys.argv[1].split(',')
    path = sys.argv[2]
    ks = []
    stamp = len(sys.argv) > 3 and sys.argv[3] == 'stamp'
    if 'k1' in which:
        import k1
        k1.STAMP = stamp
        if len(sys.argv) > 4: k1.ABL = set(sys.argv[4].split(','))
        ks.append((k1.NAME, k1.build(), 256, 256, 163840, 512, 256))
    if 'k2' in which:
        import k2
        k2.STAMP = stamp
        ks.append((k2.NAME, k2.build(), 256, 256, 163840, 512, 256))
    if 'k3' in which:
        import k3
        ks.append((k3.NAME, k3.build(), k3.GRID, 256, 0, k3.VGPR, k3.VGPR))
    make(ks, path)
```

```python
import re

COST = {'mfma': 8, 'valu': 4, 'trans': 8, 'salu': 4, 'ds': 4, 'vmem': 4, 'wait': 4, 'bar': 4, 'nop': 4, 'br': 4, 'label': 0}

def kind_of(text):
    m = text.split()[0]
    if text.endswith(':'): return 'label'
    if m.startswith('v_mfma'): return 'mfma'
    if m in ('v_exp_f32', 'v_rcp_f32', 'v_log_f32', 'v_rsq_f32', 'v_sqrt_f32'): return 'trans'
    if m.startswith('v_'): return 'valu'
    if m.startswith('ds_'): return 'ds'
    if m.startswith('buffer_') or m.startswith('global_'): return 'vmem'
    if m == 's_waitcnt': return 'wait'
    if m == 's_barrier': return 'bar'
    if m == 's_nop': return 'nop'
    if m.startswith('s_cbranch') or m in ('s_branch', 's_endpgm', 's_setpc_b64', 's_swappc_b64'): return 'br'
    return 'salu'

class I:
    __slots__ = ('t', 'k', 'tag', 'need', 'cost', 'vneed')
    def __init__(self, t, tag=None, need=(), cost=None, vneed=()):
        self.t = t.strip(); self.k = kind_of(self.t); self.tag = tag; self.need = tuple(need); self.vneed = tuple(vneed)
        if cost is None:
            cost = COST[self.k]
            if self.k == 'nop': cost = 4 * (int(self.t.split()[1]) + 1)
        self.cost = cost

class GL(I):
    __slots__ = ('members',)
    def __init__(self, *texts):
        self.members = [x if isinstance(x, I) else I(x) for x in texts]
        I.__init__(self, self.members[0].t)
        self.cost = sum(m.cost for m in self.members if m.k != 'label')

class Stream:
    def __init__(self, name, prio=0, elastic=False, pace=0):
        self.name = name; self.items = []; self.prio = prio; self.elastic = elastic; self.pace = pace
    def add(self, ins, e=0, d=10 ** 9):
        if isinstance(ins, str): ins = I(ins)
        self.items.append((e, d, ins)); return ins

SCALAR = ('salu', 'wait', 'bar', 'br', 'nop', 'label')
def cls_of(ins):
    if ins.k in SCALAR: return 0
    if ins.k in ('ds', 'vmem'): return 1
    return 2

def pack(mfmas, streams, budget=8, last_reserve=False):
    out = []
    pos = [0] * len(streams)
    n = len(mfmas)
    def eff_deadline(si):
        st = streams[si]; p = pos[si]
        return min(d for (_, d, _) in st.items[p:p + 96])
    def fill(g, bud, free_scalar):
        used = 0; level = 0
        paced = {}
        nb128 = [0]
        def heads():
            for si, st in enumerate(streams):
                if pos[si] >= len(st.items): continue
                e, d, ins = st.items[pos[si]]
                if e <= g: yield si, st, e, d, ins
        while True:
            hs = list(heads())
            trans_wait = any(ins.k == 'trans' for (_, _, _, _, ins) in hs)
            forced_vec = any(eff_deadline(si) <= g and cls_of(ins) > 0 for (si, _, _, _, ins) in hs)
            best = None
            for (si, st, e, d, ins) in hs:
                dl = eff_deadline(si)
                forced = dl <= g
                c = cls_of(ins)
                cost = ins.cost - 4 if (c == 0 and free_scalar and ins.k != 'label') else (0 if ins.k == 'label' else ins.cost)
                if isinstance(ins, GL): cost = min(cost, 4)
                if not forced:
                    if used + cost > bud: continue
                    if c < level: continue
                    if st.pace and paced.get(si, 0) >= (2 if trans_wait else st.pace): continue
                    if 'b128' in ins.t and nb128[0] >= 1: continue
                key = (0, c, dl, -st.prio, si) if forced else (1, c, dl, -st.prio, si)
                if not forced and st.pace and paced.get(si, 0) >= st.pace: key = (1, c, 10 ** 8, -st.prio, si)
                if c == 0 and level == 0 and (cost == 0 or forced or (free_scalar and isinstance(ins, GL))): key = (-1, 0, dl, -st.prio, si)
                if ins.k == 'trans' and not forced and used == 0 and not forced_vec: key = (1, 0.5, dl, -st.prio, si)
                if best is None or key < best[0]: best = (key, si, cost, c)
            if best is None: break
            _, si, cost, c = best
            ins = streams[si].items[pos[si]][2]
            if isinstance(ins, GL): out.extend(ins.members)
            else: out.append(ins)
            used += cost; pos[si] += 1
            paced[si] = paced.get(si, 0) + 1
            if 'b128' in ins.t: nb128[0] += 1
            if c == 0 and ins.k != 'label': free_scalar = False
            level = max(level, c)
        return used
    fill(-1, 0, False)
    for g, m in enumerate(mfmas):
        out.append(m)
        nxt = mfmas[g + 1] if g + 1 < len(mfmas) else None
        wants_wait = (nxt is not None and (nxt.need or nxt.vneed)) or (nxt is None and last_reserve)
        fill(g, budget, not wants_wait)
    for si, st in enumerate(streams):
        if st.elastic:
            st.items = [(-1, d - n if d < 10 ** 8 else d, ins) for (_, d, ins) in st.items[pos[si]:]]
        else:
            while pos[si] < len(st.items):
                x = st.items[pos[si]][2]
                if isinstance(x, GL): out.extend(x.members)
                else: out.append(x)
                pos[si] += 1
            st.items = []
    return out

def insert_lgkm_waits(seq, pending=()):
    seq = list(seq)
    early = {}
    prev = None
    issued_at = {}
    for i, ins in enumerate(seq):
        if ins.k == 'ds' and ins.tag is not None: issued_at[ins.tag] = i
        if ins.k == 'mfma':
            if ins.need and prev is not None:
                between = seq[prev + 1:i]
                ok = all(issued_at.get(t, -1) < prev for t in ins.need) and not any(x.k in ('label', 'br', 'bar') or (x.k == 'wait') for x in between)
                if ok: early[prev] = ins.need
            prev = i
    q = list(pending)
    out = []
    def wait_for(need):
        nonlocal q
        idx = -1
        for t in need:
            if t in q: idx = max(idx, len(q) - 1 - q[::-1].index(t))
        if idx >= 0:
            n = min(len(q) - 1 - idx, 15)
            out.append(I('s_waitcnt lgkmcnt(%d)' % n))
            q = q[len(q) - n:] if n else []
    for i, ins in enumerate(seq):
        if ins.need: wait_for(ins.need)
        if ins.k == 'wait':
            m = re.search(r'lgkmcnt\((\d+)\)', ins.t)
            if m:
                n = int(m.group(1))
                q = q[len(q) - n:] if n and len(q) > n else (q if n and len(q) <= n else [])
        if ins.k == 'ds':
            q.append(ins.tag if ins.tag is not None else ('anon', id(ins)))
        out.append(ins)
        if i in early: wait_for(early[i])
    return out, q

_reg = re.compile(r'\b([vas])\[(\d+):(\d+)\]|\b([vas])(\d+)\b')
def regs_of(op):
    r = set()
    for m in _reg.finditer(op):
        if m.group(1):
            for i in range(int(m.group(2)), int(m.group(3)) + 1): r.add((m.group(1), i))
        else:
            r.add((m.group(4), int(m.group(5))))
    if re.search(r'\bvcc\b', op): r.add(('s', 'vcc'))
    if re.search(r'\bm0\b', op): r.add(('s', 'm0'))
    if re.search(r'\bexec\b', op): r.add(('s', 'exec'))
    return r

def split_ops(text):
    parts = text.split(None, 1)
    if len(parts) == 1: return parts[0], []
    ops = [o.strip() for o in parts[1].split(',')]
    return parts[0], ops

def rw(ins):
    m, ops = split_ops(ins.t)
    k = ins.k
    w, r, c = set(), set(), set()
    if k == 'mfma':
        w = regs_of(ops[0]); r = regs_of(ops[1]) | regs_of(ops[2]); c = regs_of(ops[3])
    elif k in ('valu', 'trans'):
        if m.startswith('v_cmp'):
            w = regs_of(ops[0]); r = set().union(*[regs_of(o) for o in ops[1:]])
        elif m.startswith('v_permlane') and 'swap' in m:
            w = regs_of(ops[0]) | regs_of(ops[1]); r = set(w)
        else:
            w = regs_of(ops[0]); r = set().union(*[regs_of(o) for o in ops[1:]]) if len(ops) > 1 else set()
            if m.startswith('v_fmac') or m.startswith('v_pk_fmac') or m.startswith('v_dot2c'): r |= w
            if m.startswith('v_cndmask') and len(ops) == 3: r.add(('s', 'vcc'))
            if m.startswith('v_add_co') or m.startswith('v_addc_co'):
                w |= regs_of(ops[1])
    elif k == 'ds':
        if 'read' in m or 'permute' in m or 'swizzle' in m:
            w = regs_of(ops[0]); r = set().union(*[regs_of(o.split()[0]) for o in ops[1:]])
        else:
            r = set().union(*[regs_of(o.split()[0]) for o in ops])
    elif k == 'vmem':
        if ' lds' in ins.t:
            r = set().union(*[regs_of(o.split()[0]) for o in ops]); r.add(('s', 'm0'))
        elif 'load' in m:
            w = regs_of(ops[0]); r = set().union(*[regs_of(o.split()[0]) for o in ops[1:]])
        else:
            r = set().union(*[regs_of(o.split()[0]) for o in ops])
    elif k == 'salu':
        if m.startswith('s_cmp'):
            r = set().union(*[regs_of(o) for o in ops])
        elif ops:
            w = regs_of(ops[0]); r = set().union(*[regs_of(o) for o in ops[1:]]) if len(ops) > 1 else set()
    return w, r, c

def states(ins):
    if ins.k == 'label': return 0
    if ins.k == 'nop': return int(ins.t.split()[1]) + 1
    return 1

SCC_W = ('s_add_', 's_sub_', 's_addc', 's_subb', 's_and_', 's_or_', 's_xor_', 's_lshl', 's_lshr', 's_ashr', 's_min', 's_max', 's_cmp', 's_not', 's_bfe', 's_andn2', 's_addk', 's_cmpk')
def lint_scc(seq, name):
    errs = []
    for i, ins in enumerate(seq):
        m = ins.t.split()[0]
        if m.startswith('s_cbranch_scc') or m.startswith('s_cselect') or m.startswith('s_addc') or m.startswith('s_subb'):
            for j in range(i - 1, -1, -1):
                w = seq[j].t.split()[0]
                if seq[j].k == 'label' and not seq[j].t.endswith('_back:'):
                    errs.append('%s: SCC read crosses label %s: %s' % (name, seq[j].t, ins.t)); break
                if any(w.startswith(x) for x in SCC_W):
                    good = w.startswith('s_cmp') if not (m.startswith('s_addc') or m.startswith('s_subb')) else (w.startswith('s_add_u32') or w.startswith('s_sub_u32'))
                    if not good: errs.append('%s: SCC for "%s" comes from "%s"' % (name, ins.t, seq[j].t))
                    break
    return errs

def lint(seq, name=''):
    errs = lint_scc(seq, name)
    info = [rw(i) for i in seq]
    n = len(seq)
    for a in range(n):
        A = seq[a]; wa, ra, ca = info[a]
        if A.k == 'label': continue
        dist = 0
        for b in range(a + 1, min(n, a + 40)):
            B = seq[b]; wb, rb, cb = info[b]
            if B.k == 'label': continue
            need = 0; why = ''
            mA = A.t.split()[0]; mB = B.t.split()[0]
            passesA = 4 if '16x16x32' in mA else 8
            vw = {x for x in wa if x[0] in 'va'}
            sw = {x for x in wa if x[0] == 's'}
            if A.k in ('valu', 'trans'):
                if B.k == 'mfma' and vw & (rb | cb): need, why = 2, 'VALU->MFMA operand'
                if mB.startswith('v_permlane') and vw & rb: need, why = max(need, 2), 'VALU->permlane'
                if mB.startswith('v_readfirstlane') or mB.startswith('v_readlane'):
                    if vw & rb: need, why = max(need, 1), 'VALU->readlane'
                if B.k in ('valu', 'trans') and 'dpp' in B.t or (B.k in ('valu', 'trans') and ('row_' in B.t or 'quad_perm' in B.t)):
                    if vw & rb: need, why = max(need, 2), 'VALU->DPP'
                if sw & rb:
                    if B.k == 'vmem': need, why = max(need, 5), 'VALU sgpr->VMEM'
                    elif B.k in ('valu', 'trans'): need, why = max(need, 2), 'VALU sgpr->VALU'
                if A.k == 'trans' and B.k == 'valu' and vw & rb: need, why = max(need, 1), 'trans->VALU'
                if A.k == 'trans' and B.k == 'trans' and vw & rb: need, why = max(need, 1), 'trans->trans'
            if A.k == 'mfma':
                if B.k == 'mfma':
                    if wa & rb: need, why = passesA + 4, 'MFMA D->MFMA A/B'
                    elif wa & cb and not (wa == cb and mA == mB): need, why = passesA + 2, 'MFMA D->overlapping C'
                    elif wa & wb and not (wa == wb and wa == cb) and not (wa == wb): need, why = passesA + 2, 'MFMA WAW partial'
                elif B.k in ('valu', 'trans'):
                    if wa & (rb | wb): need, why = passesA + 4, 'MFMA D->VALU'
                    elif ca & wb: need, why = passesA - 1, 'MFMA C WAR VALU'
                elif B.k in ('ds', 'vmem'):
                    if wa & (rb | wb): need, why = passesA + 4, 'MFMA D->mem'
            if A.k == 'vmem' and ('store' in mA) and ('x4' in mA or 'x3' in mA):
                data = regs_of(split_ops(A.t)[1][0])
                if data & wb and B.k in ('valu', 'trans'): need, why = max(need, 2), 'store data WAR'
                elif data & wb and B.k != 'mfma': need, why = max(need, 1), 'store data WAR'
            if A.k == 'salu' and ('s', 'm0') in wa and B.k == 'vmem' and ' lds' in B.t: need, why = max(need, 1), 'M0->LDS DMA'
            if need > dist:
                errs.append('%s: %s needs %d has %d\n    %s\n    %s' % (name, why, need, dist, A.t, B.t))
            dist += states(B)
            if dist >= 20: break
    return errs

class Prog:
    def __init__(self):
        self.seq = []
    def __call__(self, s, **kw):
        if isinstance(s, GL): self.seq.extend(s.members); return s
        if isinstance(s, I): self.seq.append(s); return s
        if isinstance(s, (list, tuple)):
            for x in s: self(x)
            return
        last = None
        for l in s.strip('\n').split('\n'):
            l = l.split(';')[0].strip()
            if l:
                last = I(l, **kw); self.seq.append(last)
        return last
    def text(self):
        return ''.join((i.t if i.k == 'label' else '  ' + i.t) + '\n' for i in self.seq)


def fix_m0(seq):
    out = list(seq)
    i = 0
    while i < len(out) - 1:
        a, b = out[i], out[i + 1]
        if a.k == 'salu' and a.t.split()[1].startswith('m0') and b.k == 'vmem' and ' lds' in b.t:
            prev = out[i - 1] if i else None
            srcs = regs_of(a.t.split(None, 1)[1].split(',', 1)[1])
            ok = prev is not None and prev.k in ('mfma', 'valu', 'trans', 'ds', 'salu') and not (rw(prev)[0] & srcs) \
                and not (prev.k == 'salu' and (prev.t.startswith('s_cmp') or prev.t.startswith('s_cselect') or ('s', 'm0') in rw(prev)[0]))
            if ok:
                out[i - 1], out[i] = a, prev
            else:
                out.insert(i + 1, I('s_nop 0')); i += 1
        i += 1
    return out


def insert_vm_waits(seq, issued):
    out = []
    for ins in seq:
        if ins.vneed:
            idx = max((i for i, t in enumerate(issued) if t in ins.vneed), default=-1)
            missing = [t for t in ins.vneed if t not in issued]
            assert not missing, missing
            n = min(len(issued) - 1 - idx, 63)
            if ins.k == 'wait':
                ins = I('s_waitcnt vmcnt(%d) %s' % (n, ins.t.split(None, 1)[1] if len(ins.t.split()) > 1 else ''), tag=ins.tag, need=ins.need)
            else:
                out.append(I('s_waitcnt vmcnt(%d)' % n))
        if ins.k == 'vmem': issued.append(ins.tag if ins.tag is not None else ('anon', id(ins)))
        out.append(ins)
    return out
```

```python
from fw import *
from common import *

NAME = 'k1_proj_kernel'
sW, sH, sB, sRB = 4, 5, 6, 7
SX, SC, SWQ, SWG, SWU, SWK, SWV, SWS, SGW = 8, 12, 16, 20, 24, 28, 32, 36, 40
sM0W, sM0W16, sSOFF, sXB, sCB = 44, 45, 46, 47, 48
sT0, sT1, sT2 = 49, 50, 51
sQSC = 52
sQO, sHO, sKO, sOUT = 53, 54, 55, 56
sCOL, sCOLF = 57, 58
sCNT, sCK, sGRP, sC1 = 59, 60, 61, 62
sHOUT, sNXO = 63, 3
SNX = 96
sKPTR = 64
vLANE, vL16, vL16B = 0, 1, 2
vT = list(range(3, 12))
vVA = [12, 13, 14, 15]
vVB = [16, 17, 18, 19]
vDOFF = list(range(20, 36))
vSOFF = [36, 37, 38, 39]
vRD = [40, 41]
vIO = [42, 43]
vPAT = [44, 45]
vC2, vDUM = 46, 47
XR = 48
ACCG, ACCU, TMP = 160, 192, 224
RING_A = 224
vPFQ, vPFF, vPFK = 34, 35, 11
ACCX = 128
sPFO, sGI = 100, 101
SPF = 64
RING_V, ACCKV, TMPKV = 48, 80, 112
PRE = 3
STAMP = False
MAPB = False
USE_PF = True
ST_FLAGS = ''
ABL = set()
WS_DBG = 0x0c000000

def stamp_ops():
    return [I('v_mov_b32 v%d, s92' % vDUM), I('buffer_store_dword v%d, off, s[%d:%d], s94' % (vDUM, SWS, SWS + 3)), I('s_add_u32 s94, s94, 4'), I('s_memtime s[92:93]')]

def vr(b, n=4): return 'v[%d:%d]' % (b, b + n - 1)
def ar(b, n=4): return 'a[%d:%d]' % (b, b + n - 1)
def xfrag(s, t): return vr(XR + 8 * s + 4 * t) if s < 10 else ar(192 + 8 * (s - 10) + 4 * t)
def cfrag(s, t): return ar(8 * s + 4 * t)
def acc(base, u, t): return base + 8 * u + 4 * t
def mfma(d, a, b, c): return 'v_mfma_f32_16x16x32_bf16 %s, %s, %s, %s' % (d, a, b, c)

def srd(p, base, ptr, size):
    p('s_mov_b32 s%d, s%d' % (base, ptr))
    p('s_and_b32 s%d, s%d, 0xffff' % (base + 1, ptr + 1))
    p('s_mov_b32 s%d, 0x%x' % (base + 2, size))
    p('s_mov_b32 s%d, 0x20000' % (base + 3))

class Eng:
    def __init__(self): self.sigma = 0; self.uid = 0
    def ring(self, sg, in_agpr, half):
        b = (RING_A if in_agpr else RING_V) + 8 * (sg % 4) + 4 * half
        return ('a' if in_agpr else 'v'), b
    def reads(self, st, slot, sg):
        kp, u = divmod(slot, st['nu'])
        va = vVA if st['buf'] == 0 else vVB
        res = []
        for hf in range(2):
            s = 2 * kp + hf
            cls, b = self.ring(sg, st['ring_a'], hf)
            for j in range(2):
                addr = va[u] if j == 0 else va[u ^ 2]
                self.uid += 1
                res.append(I('ds_read_b64_tr_b16 %s[%d:%d], v%d offset:%d' % (cls, b + 2 * j, b + 2 * j + 1, addr, s * 4096 + 512 * j), tag=('w', self.uid)))
        return res

def nslots(st): return (st['nk'] // 2) * st['nu']

def dma_w(st, first=0, last=None):
    res = []
    nk = st['nk']; m0 = sM0W if nk == 14 else sM0W16
    last = nk if last is None else last
    for x in st['soff']: res.append(x if isinstance(x, I) else I(x))
    for i in range(first, last):
        if i % 4 == 0 or i == first:
            res.append(I('s_add_u32 m0, s%d, %d' % (m0, st['buf'] * 65536 + (i // 4) * 4096)))
        res.append(I('buffer_load_dwordx4 v%d, s[%d:%d], s%d offen offset:%d lds' % (vDOFF[i], st['srd'], st['srd'] + 3, sSOFF, (i % 4) * 1024), tag=('wd', next_id())))
    return res

_ids = [0]
def next_id():
    _ids[0] += 1
    return _ids[0]

def pf(voff, srd_, soff):
    return I('buffer_load_dword v%d, v%d, s[%d:%d], s%d offen' % (vDUM, voff, srd_, srd_ + 3, soff))

def doff_setup(nk, rs):
    res = []
    a = res.append
    a(I('v_lshrrev_b32 v%d, 3, v%d' % (vT[0], vLANE)))
    a(I('s_mul_i32 s%d, s%d, %d' % (sT0, sW, 8 * nk * rs)))
    a(I('v_mul_u32_u24 v%d, %d, v%d' % (vT[1], rs, vT[0])))
    a(I('v_add_u32 v%d, s%d, v%d' % (vT[1], sT0, vT[1])))
    a(I('v_bfe_u32 v%d, v%d, 4, 2' % (vT[2], vLANE)))
    a(I('v_bfe_u32 v%d, v%d, 1, 2' % (vT[3], vLANE)))
    a(I('v_xor_b32 v%d, v%d, v%d' % (vT[2], vT[2], vT[3])))
    a(I('v_and_b32 v%d, 1, v%d' % (vT[3], vLANE)))
    a(I('v_lshlrev_b32 v%d, 4, v%d' % (vT[3], vT[3])))
    a(I('v_add_u32 v%d, v%d, v%d' % (vT[1], vT[1], vT[3])))
    a(I('v_lshl_add_u32 v%d, v%d, 5, v%d' % (vPAT[0], vT[2], vT[1])))
    a(I('v_xor_b32 v%d, 2, v%d' % (vT[2], vT[2])))
    a(I('v_lshl_add_u32 v%d, v%d, 5, v%d' % (vPAT[1], vT[2], vT[1])))
    for i in range(nk):
        a(I('v_add_u32 v%d, 0x%x, v%d' % (vDOFF[i], 8 * i * rs - (i % 4) * 1024, vPAT[i % 2])))
    return res

def staging_offsets(rs):
    res = []
    a = res.append
    a(I('v_lshrrev_b32 v%d, 3, v%d' % (vT[0], vLANE)))
    a(I('s_lshl_b32 s%d, s%d, 5' % (sT0, sRB)))
    a(I('v_add_u32 v%d, s%d, v%d' % (vT[1], sT0, vT[0])))
    a(I('s_mov_b32 s%d, %d' % (sT1, rs)))
    a(I('v_mul_lo_u32 v%d, s%d, v%d' % (vT[1], sT1, vT[1])))
    a(I('v_lshrrev_b32 v%d, 4, v%d' % (vT[2], vLANE)))
    a(I('v_and_b32 v%d, 7, v%d' % (vT[3], vLANE)))
    a(I('v_xor_b32 v%d, v%d, v%d' % (vT[2], vT[2], vT[3])))
    for i in range(4):
        t = vT[4]
        if i % 2:
            a(I('v_xor_b32 v%d, 4, v%d' % (t, vT[2])))
            a(I('v_lshl_add_u32 v%d, v%d, 4, v%d' % (t, t, vT[1])))
        else:
            a(I('v_lshl_add_u32 v%d, v%d, 4, v%d' % (t, vT[2], vT[1])))
        a(I('v_add_u32 v%d, 0x%x, v%d' % (vSOFF[i], 8 * i * rs - 1024 * i, t)))
    return res

def staging_dma(srdreg, ldsreg, slot, chunk):
    res = [I('s_add_u32 m0, s%d, %d' % (ldsreg, slot * 4096)), I('s_movk_i32 s%d, %d' % (sCK, chunk * 128))]
    for i in range(4):
        res.append(I('buffer_load_dwordx4 v%d, s[%d:%d], s%d offen offset:%d lds' % (vSOFF[i], srdreg, srdreg + 3, sCK, i * 1024), tag=('cd', next_id())))
    return res

def c_reads(eng, chunk):
    res = []
    for sp in range(2):
        for t in range(2):
            eng.uid += 1
            res.append(I('ds_read_b128 %s, v%d offset:%d' % (cfrag(2 * chunk + sp, t), vRD[sp], (chunk % 2) * 4096 + t * 2048), tag=('c', eng.uid)))
    return res

def segment(eng, st, nxt, pre_tags, streams, pending, wtags=None, issued=None):
    S_ = nslots(st); nu = st['nu']; sg0 = eng.sigma
    mf = []
    rd = Stream('wreads', prio=5, pace=1)
    tags = {i: pre_tags[i] for i in range(PRE)}
    for slot in range(S_):
        kp, u = divmod(slot, nu)
        if slot + PRE < S_:
            r = eng.reads(st, slot + PRE, sg0 + slot + PRE)
            tags[slot + PRE] = [x.tag for x in r]
            for q, x in enumerate(r): rd.add(x, e=4 * slot - 1, d=4 * slot + q)
    for slot in range(S_):
        kp, u = divmod(slot, nu)
        for t in range(2):
            for hf in range(2):
                s = 2 * kp + hf
                cls, b = eng.ring(sg0 + slot, st['ring_a'], hf)
                wf = '%s[%d:%d]' % (cls, b, b + 3)
                rf = st['res'](st['k0'] + s, t)
                d = vr(acc(st['acc'], u, t))
                c = '0' if (st['first'] and s == 0) else d
                if st.get('out') is not None and s == st['nk'] - 1: d = vr(acc(st['out'], u, t))
                need = ()
                if t == 0 and hf == 0:
                    need = list(tags[slot])
                    if slot % 2 == 0 and slot + 1 < S_ and slot + 1 >= PRE: need += tags[slot + 1]
                mf.append(I(mfma(d, rf, wf, c) if st['swap'] else mfma(d, wf, rf, c), need=need))
    n = len(mf)
    nxt_tags = None
    bar_gap = 4 * (S_ - PRE) + 3
    bs = Stream('bar', prio=9)
    if nxt is not None:
        bs.add(I('s_waitcnt lgkmcnt(0)', vneed=wtags if 'nowait' not in ABL else ()), e=bar_gap, d=bar_gap)
        if 'nobar' not in ABL: bs.add(I('s_barrier'), e=bar_gap, d=bar_gap)
        if STAMP:
            for x in stamp_ops(): bs.add(x, e=bar_gap, d=bar_gap)
        nxt_tags = []
        k = 0
        for ps in range(PRE):
            r = eng.reads(nxt, ps, sg0 + S_ + ps)
            nxt_tags.append([x.tag for x in r])
            for q, x in enumerate(r):
                e = bar_gap + 1 + k // 2 if ps < 2 else 4 * (S_ - 1) + q - 1
                k += 1
                e = min(max(e, bar_gap + 1), n - 1)
                bs.add(x, e=e, d=e)
    eng.sigma = sg0 + S_
    extra = []
    if st.get('mid_bar'):
        mb = Stream('midbar', prio=9)
        mb.add(I('s_waitcnt vmcnt(63)', tag='MID'), e=st['mid_bar'], d=st['mid_bar'])
        mb.add(I('s_barrier'), e=st['mid_bar'], d=st['mid_bar'])
        extra.append(mb)
    seq = pack(mf, extra + [rd, bs] + streams, budget=8)
    for i, x in enumerate(seq):
        if x.tag == 'MID':
            seq[i] = I('s_waitcnt vmcnt(%d)' % sum(1 for y in seq[:i] if y.k == 'vmem'))
    seq = insert_vm_waits(seq, issued if issued is not None else [])
    seq, pend = insert_lgkm_waits(seq, pending)
    return seq, nxt_tags, pend, n

def store(src, voff, off, so=None):
    if 'nost' in ABL: return I('s_nop 0')
    return I('buffer_store_dwordx4 %s, v%d, s[%d:%d], s%d offen offset:%d%s' % (vr(src), voff, SWS, SWS + 3, sOUT if so is None else so, off, ST_FLAGS))

def epilogue(kind, outb, soff, scale=False):
    ops = [(-1, I(x)) for x in soff]
    frs = []
    if kind in ('q', 'k'):
        for p in range(2):
            for t in range(2): frs.append(((2 * p, t), (2 * p + 1, t), vL16 if t == 0 else vL16B, p * 1024))
    else:
        for u in range(4): frs.append(((u, 0), (u, 1), vL16, u * 1024))
    for (A, B, voff, off) in frs:
        dst = acc(outb, *A)
        for half, (u, t) in enumerate((A, B)):
            a0 = acc(outb, u, t); e = 4 * u + 2 * t + 1 - 16 + 6
            if scale and 'noscale' not in ABL:
                for r in range(4): ops.append((e, I('v_mul_f32 v%d, s%d, v%d' % (a0 + r, sQSC, a0 + r))))
            ops.append((e, I('v_cvt_pk_bf16_f32 v%d, v%d, v%d' % (dst + 2 * half, a0, a0 + 1))))
            ops.append((e, I('v_cvt_pk_bf16_f32 v%d, v%d, v%d' % (dst + 2 * half + 1, a0 + 2, a0 + 3))))
        ops.append((e, store(dst, voff, off)))
    res = []; last = -1
    for (e, ins) in ops:
        last = max(last, e); res.append((last, ins))
    return res

def epi_stream(items, dl):
    s = Stream('epi', prio=3)
    for (e, ins) in items: s.add(ins, e=e, d=dl)
    return s

def gelu_stream(gbase, nu, name):
    st = Stream(name, prio=1, elastic=True)
    if 'nogelu' in ABL: return st
    for u in range(nu):
        for t in range(2):
            a0 = acc(gbase, u, t); T = vT[4:8]
            for r in range(4): st.add('v_mul_f32 v%d, v%d, v%d' % (T[r], a0 + r, a0 + r))
            for r in range(4): st.add('v_fma_f32 v%d, v%d, v%d, s%d' % (T[r], T[r], vC2, sC1))
            for r in range(4): st.add('v_mul_f32 v%d, v%d, v%d' % (T[r], a0 + r, T[r]))
            for r in range(4): st.add('v_exp_f32 v%d, v%d' % (T[r], T[r]))
            for r in range(4): st.add('v_fma_f32 v%d, v%d, v%d, v%d' % (T[r], T[r], vIO[t], vIO[t]))
            for r in range(4): st.add('v_rcp_f32 v%d, v%d' % (T[r], T[r]))
            for r in range(4): st.add('v_mul_f32 v%d, v%d, v%d' % (a0 + r, a0 + r, T[r]))
    return st


def ffn_finish(st, gbase, ubase, nu, dg, e0):
    st.add('s_add_u32 s%d, s%d, %d' % (sHOUT, sHO, dg * 4096), e=e0)
    for p_ in range(2):
        for t in range(2):
            dst = acc(ubase, 2 * p_, t)
            for half in range(2):
                u = 2 * p_ + half
                if u < nu:
                    g0 = acc(gbase, u, t); u0 = acc(ubase, u, t)
                    for r in range(4): st.add('v_mul_f32 v%d, v%d, v%d' % (g0 + r, g0 + r, u0 + r), e=e0)
                    st.add('v_cvt_pk_bf16_f32 v%d, v%d, v%d' % (dst + 2 * half, g0, g0 + 1), e=e0)
                    st.add('v_cvt_pk_bf16_f32 v%d, v%d, v%d' % (dst + 2 * half + 1, g0 + 2, g0 + 3), e=e0)
                else:
                    st.add('v_mov_b32 v%d, 0' % (dst + 2 * half), e=e0)
                    st.add('v_mov_b32 v%d, 0' % (dst + 2 * half + 1), e=e0)
            st.add(store(dst, vL16, p_ * 2048 + t * 1024, so=sHOUT), e=e0)

def spread(name, ins, n, lo=0.0, hi=0.55, dl=0.62, prio=3):
    s = Stream(name, prio=prio)
    for i, x in enumerate(ins):
        e = int(n * (lo + (hi - lo) * i / len(ins)))
        s.add(x, e=e - 1 if i == 0 else e, d=int(n * dl))
    return s

def pf_w(stages, n):
    st = stages[n]
    so = [x.replace('s%d,' % sSOFF, 's%d,' % sPFO, 1) for x in st['soff']]
    return [I(x) for x in so] + [pf(vPFF if st['srd'] in (SWG, SWU) else vPFQ, st['srd'], sPFO)]

def pf_c(pair):
    return [I('s_movk_i32 s%d, %d' % (sPFO, pair * 256)), pf(vPFC, SC, sPFO)]

def pf_kv_static(G):
    return [I('s_add_u32 s%d, s%d, %d' % (sPFO, sCOL, G * 128)), pf(vPFK, SWK, sPFO)]

def pf_kv_loop():
    return [I('s_add_u32 s%d, s%d, 2' % (sT0, sGI)),
            GL('s_cmp_lt_u32 s%d, 4' % sT0, 's_cselect_b32 s%d, s%d, s%d' % (SPF, SWK, SWV), 's_cselect_b32 s%d, s%d, s%d' % (SPF + 1, SWK + 1, SWV + 1)),
            I('s_and_b32 s%d, s%d, 3' % (sT1, sT0)), I('s_lshl_b32 s%d, s%d, 7' % (sT1, sT1)), I('s_add_u32 s%d, s%d, s%d' % (sPFO, sCOL, sT1)),
            GL('s_cmp_lt_u32 s%d, 8' % sT0, 's_cselect_b32 s%d, s%d, 0x10000000' % (sPFO, sPFO)), pf(vPFK, SPF, sPFO)]

def flush(p, stream, issued=None):
    for (_, _, x) in stream.items:
        p(x)
        if issued is not None and x.k == 'vmem': issued.append(('flushed', id(x)))
    stream.items = []

def kv_stage(kind, half, srd_, soff, buf):
    return dict(nk=16, nu=4, k0=16 * half, first=(half == 0), res=cfrag, swap=(kind == 'v'), acc=ACCKV, ring_a=False,
                srd=srd_, soff=soff, buf=buf, out=TMPKV if half == 1 else None)

def epi_soff(kind):
    if kind == 'k': return ['s_lshl_b32 s%d, s%d, 4' % (sOUT, sGRP), 's_add_u32 s%d, s%d, s%d' % (sOUT, sOUT, sKO)]
    return ['s_lshl_b32 s%d, s%d, 5' % (sOUT, sGRP), 's_add_u32 s%d, s%d, s%d' % (sOUT, sOUT, sKO), 's_add_u32 s%d, s%d, 0x4000' % (sOUT, sOUT)]

def build():
    p = Prog()
    eng = Eng()
    p('%s:' % NAME)
    p('s_cmp_ge_u32 s2, 256')
    p('s_cbranch_scc1 L_k1_end')
    p('s_load_dwordx16 s[%d:%d], s[0:1], 0' % (sKPTR, sKPTR + 15))
    p('s_load_dwordx8 s[%d:%d], s[0:1], 64' % (sKPTR + 16, sKPTR + 23))
    p('s_load_dwordx4 s[%d:%d], s[0:1], 96' % (sKPTR + 24, sKPTR + 27))
    p('s_getpc_b64 s[92:93]')
    p('s_mov_b32 s94, 0x10000')
    p('s_mov_b32 s95, 0x20000')
    p('v_lshlrev_b32 v3, 7, v0')
    p('buffer_load_dword v%d, v3, s[92:95], 0 offen' % vDUM)
    p('v_add_u32 v3, 0x8000, v3')
    p('buffer_load_dword v%d, v3, s[92:95], 0 offen' % vDUM)
    p('v_lshrrev_b32 v3, 6, v0')
    p('v_and_b32 v%d, 63, v0' % vLANE)
    p('v_readfirstlane_b32 s%d, v3' % sW)
    p('s_and_b32 s3, s2, 7')
    p('s_lshr_b32 s%d, s2, 3' % sT0)
    if not MAPB:
        p('s_and_b32 s%d, s%d, 1' % (sT1, sT0))
        p('s_lshl_b32 s3, s3, 1')
        p('s_add_u32 s%d, s3, s%d' % (sH, sT1))
        p('s_lshr_b32 s%d, s%d, 1' % (sB, sT0))
        p('s_mov_b32 s%d, s%d' % (sGI, sB))
    else:
        p('s_lshr_b32 s%d, s3, 1' % sT1)
        p('s_lshl_b32 s%d, s%d, 2' % (sT1, sT1))
        p('s_and_b32 s%d, s%d, 3' % (sH, sT0))
        p('s_add_u32 s%d, s%d, s%d' % (sH, sH, sT1))
        p('s_lshr_b32 s%d, s%d, 2' % (sGI, sT0))
        p('s_and_b32 s3, s3, 1')
        p('s_lshl_b32 s3, s3, 3')
        p('s_add_u32 s%d, s3, s%d' % (sB, sGI))
    p('s_lshl_b32 s%d, s%d, 2' % (sRB, sB))
    p('s_add_u32 s%d, s%d, s%d' % (sRB, sRB, sW))
    p('v_lshlrev_b32 v%d, 4, v%d' % (vL16, vLANE))
    p('v_add_u32 v%d, 0x2000, v%d' % (vL16B, vL16))
    p('s_mul_i32 s%d, s%d, %d' % (sM0W, sW, 14 * 1024))
    p('s_mul_i32 s%d, s%d, %d' % (sM0W16, sW, 16 * 1024))
    p('s_mul_i32 s%d, s%d, %d' % (sXB, sW, 28 * 1024))
    p('s_add_u32 s%d, s%d, %d' % (sXB, sXB, 48 * 1024))
    p('s_lshl_b32 s%d, s%d, 13' % (sCB, sW))
    p('s_add_u32 s%d, s%d, %d' % (sCB, sCB, 128 * 1024))
    p('s_lshl_b32 s%d, s%d, 9' % (sCOL, sH))
    p('s_lshl_b32 s%d, s%d, 8' % (sCOLF, sH))
    p('s_cmp_lt_u32 s%d, 14' % sH)
    p('s_cselect_b32 s%d, s%d, 0x10000000' % (sCOLF, sCOLF))
    p('s_mov_b32 s%d, %s' % (sQSC, hexf(LOG2E / 16.0)))
    c1 = -2.0 * LOG2E * 0.7978845608028654
    p('s_mov_b32 s%d, %s' % (sC1, hexf(c1)))
    p('v_mov_b32 v%d, %s' % (vC2, hexf(c1 * 0.044715)))
    p('s_lshl_b32 s%d, s%d, 6' % (sT0, sH))
    p('s_add_u32 s%d, s%d, s%d' % (sT0, sT0, sRB))
    p('s_lshl_b32 s%d, s%d, 14' % (sQO, sT0))
    p('s_add_u32 s%d, s%d, 0x%x' % (sQO, sQO, WS_Q))
    p('s_lshl_b32 s%d, s%d, 15' % (sKO, sT0))
    p('s_lshl_b32 s%d, s%d, 4' % (sT0, sRB))
    p('s_add_u32 s%d, s%d, s%d' % (sT0, sT0, sH))
    p('s_lshl_b32 s%d, s%d, 13' % (sHO, sT0))
    p('s_add_u32 s%d, s%d, 0x%x' % (sHO, sHO, WS_H))
    p('s_waitcnt lgkmcnt(0)')
    kp = lambda n: sKPTR + KA[n] // 4
    srd(p, SX, kp('x'), SZ['x']); srd(p, SC, kp('c'), SZ['c']); srd(p, SWQ, kp('wq'), SZ['wq'])
    srd(p, SWG, kp('wg'), SZ['wg']); srd(p, SWU, kp('wu'), SZ['wu']); srd(p, SWK, kp('wuk'), SZ['wuk'])
    srd(p, SWV, kp('wuv'), SZ['wuv']); srd(p, SWS, kp('ws'), SZ['ws']); srd(p, SGW, kp('gw'), SZ['gw'])
    srd(p, SNX, kp('wuk'), SZ['wuk'])
    kp2 = lambda n: {'wo': sKPTR + KA['wo'] // 4, 'wd': sKPTR + KA['wd'] // 4}[n]
    if STAMP:
        p('s_lshl_b32 s94, s2, 2')
        p('s_add_u32 s94, s94, s%d' % sW)
        p('s_lshl_b32 s94, s94, 8')
        p('s_add_u32 s94, s94, 0x%x' % WS_DBG)
        p('s_memrealtime s[92:93]')
        p('s_waitcnt lgkmcnt(0)')
        p(stamp_ops())
        p('s_waitcnt lgkmcnt(0)')
    rw = 16 if MAPB else 8
    p('s_lshl_b32 s%d, s%d, 2' % (sT0, sGI))
    p('s_add_u32 s%d, s%d, s%d' % (sT0, sT0, sW))
    p('v_and_b32 v%d, %d, v%d' % (vT[0], rw - 1, vLANE))
    p('s_mul_i32 s%d, s%d, %d' % (sT1, sT0, rw))
    p('v_add_u32 v%d, s%d, v%d' % (vT[0], sT1, vT[0]))
    p('v_cmp_gt_u32 vcc, %d, v%d' % (rw, vLANE))
    p('v_mov_b32 v%d, 0x7ff00000' % vT[3])
    p('v_lshlrev_b32 v%d, 13, v%d' % (vT[4], vT[0]))
    p('v_cndmask_b32 v%d, v%d, v%d, vcc' % (vPFQ, vT[3], vT[4]))
    p('v_mul_u32_u24 v%d, 3584, v%d' % (vT[4], vT[0]))
    p('v_cndmask_b32 v%d, v%d, v%d, vcc' % (vPFF, vT[3], vT[4]))
    p('v_and_b32 v%d, %d, v%d' % (vT[0], 2 * rw - 1, vLANE))
    p('s_lshl_b32 s%d, s%d, 1' % (sT1, sT1))
    p('v_add_u32 v%d, s%d, v%d' % (vT[0], sT1, vT[0]))
    p('v_cmp_gt_u32 vcc, %d, v%d' % (2 * rw, vLANE))
    p('v_lshlrev_b32 v%d, 13, v%d' % (vT[4], vT[0]))
    p('s_nop 0')
    p('v_cndmask_b32 v%d, v%d, v%d, vcc' % (vPFK, vT[3], vT[4]))
    p(staging_offsets(M * 2))
    for ch in range(7): p(staging_dma(SX, sXB, ch, ch))
    stages = []
    for dg in range(2):
        so = ['s_add_u32 s%d, s%d, %d' % (sSOFF, sCOLF, dg * 128)]
        stages.append(dict(nk=14, nu=4, k0=0, first=True, res=xfrag, swap=False, acc=ACCG if dg == 0 else TMP, ring_a=True, srd=SWG, soff=so))
        stages.append(dict(nk=14, nu=4, k0=0, first=True, res=xfrag, swap=False, acc=ACCU if dg == 0 else ACCX, ring_a=True, srd=SWU, soff=so))
    for G in range(4):
        stages.append(dict(nk=14, nu=4, k0=0, first=True, res=xfrag, swap=False, acc=ACCG, out=ACCU, ring_a=True, srd=SWQ,
                           soff=['s_add_u32 s%d, s%d, %d' % (sSOFF, sCOL, G * 128)]))
    for i, st in enumerate(stages): st['buf'] = i % 2
    stages.append(kv_stage('k', 0, SWK, ['s_mov_b32 s%d, s%d' % (sSOFF, sCOL)], 0))
    stages.append(kv_stage('k', 1, SWK, ['s_add_u32 s%d, s%d, %d' % (sSOFF, sCOL, 512 * 8192)], 1))
    st0 = stages[0]
    st0['mid_bar'] = 76
    p(doff_setup(14, F * 2))
    p(st0['soff'])
    p('s_cmp_eq_u32 s%d, 3' % sW)
    p('s_cbranch_scc1 L_k1_w3a')
    p(dma_w(st0)[1:])
    p('s_branch L_k1_w3b')
    p('L_k1_w3a:')
    p(dma_w(st0, 0, 6)[1:])
    p('L_k1_w3b:')
    p('v_lshrrev_b32 v%d, 4, v%d' % (vT[0], vLANE))
    p('v_lshlrev_b32 v%d, 4, v%d' % (vT[0], vT[0]))
    for s in range(14):
        p('buffer_load_dwordx4 %s, v%d, s[%d:%d], 0 offen offset:%d' % (ar(4 * s), vT[0], SGW, SGW + 3, 64 * s))
    npf = 0
    if USE_PF:
        nsh = 8 if MAPB else 16
        rows = 448 // (nsh * 4)
        p('s_lshl_b32 s%d, s%d, 2' % (sT0, sGI))
        p('s_add_u32 s%d, s%d, s%d' % (sT0, sT0, sW))
        p('s_mul_i32 s%d, s%d, %d' % (sT0, sT0, rows))
        p('v_mov_b32 v%d, 0x7ff00000' % vT[3])
        for (shift, rs_, srds, so) in ((1, 3584, (SWG, SWU), sCOLF), (2, 8192, (SWQ,), sCOL)):
            per = 64 >> shift
            for part in range((rows + per - 1) // per):
                p('v_lshrrev_b32 v%d, %d, v%d' % (vT[0], shift, vLANE))
                if part: p('v_add_u32 v%d, %d, v%d' % (vT[0], part * per, vT[0]))
                p('v_cmp_gt_u32 vcc, %d, v%d' % (rows, vT[0]))
                p('v_add_u32 v%d, s%d, v%d' % (vT[0], sT0, vT[0]))
                p('v_mul_u32_u24 v%d, %d, v%d' % (vT[0], rs_, vT[0]))
                p('v_and_b32 v%d, %d, v%d' % (vT[1], (1 << shift) - 1, vLANE))
                p('v_lshl_add_u32 v%d, v%d, 7, v%d' % (vT[0], vT[1], vT[0]))
                p('v_cndmask_b32 v%d, v%d, v%d, vcc' % (vT[0], vT[3], vT[0]))
                for sr in srds:
                    p(pf(vT[0], sr, so)); npf += 1
        p('s_lshl_b32 s%d, s2, 14' % sT1)
        p('s_lshl_b32 s%d, s%d, 12' % (sT2, sW))
        p('s_add_u32 s%d, s%d, s%d' % (sPFO, sT1, sT2))
        p('v_lshlrev_b32 v%d, 7, v%d' % (vT[0], vLANE))
        p('v_cmp_gt_u32 vcc, 32, v%d' % vLANE)
        p('s_nop 1')
        p('v_cndmask_b32 v%d, v%d, v%d, vcc' % (vT[0], vT[3], vT[0]))
        p(pf(vT[0], SC, sPFO)); npf += 1
    p('v_lshrrev_b32 v%d, 4, v%d' % (vT[0], vLANE))
    p('v_bfe_u32 v%d, v%d, 2, 2' % (vT[1], vLANE))
    p('v_and_b32 v%d, 3, v%d' % (vT[2], vLANE))
    p('v_lshl_add_u32 v%d, v%d, 3, v%d' % (vT[3], vT[0], vT[1]))
    p('v_lshlrev_b32 v%d, 7, v%d' % (vT[3], vT[3]))
    p('v_lshl_add_u32 v%d, v%d, 3, v%d' % (vT[3], vT[2], vT[3]))
    p('v_lshrrev_b32 v%d, 1, v%d' % (vT[4], vT[1]))
    p('v_and_b32 v%d, 1, v%d' % (vT[5], vT[0]))
    p('v_lshlrev_b32 v%d, 1, v%d' % (vT[5], vT[5]))
    p('v_xor_b32 v%d, v%d, v%d' % (vT[4], vT[4], vT[5]))
    for v in range(4):
        p('v_xor_b32 v%d, %d, v%d' % (vT[5], v, vT[4]))
        p('v_lshl_add_u32 v%d, v%d, 5, v%d' % (vVA[v], vT[5], vT[3]))
        p('v_add_u32 v%d, 0x10000, v%d' % (vVB[v], vVA[v]))
    p('v_and_b32 v%d, 15, v%d' % (vT[1], vLANE))
    p('v_bfe_u32 v%d, v%d, 1, 3' % (vT[2], vLANE))
    p('v_xor_b32 v%d, v%d, v%d' % (vT[2], vT[2], vT[0]))
    p('v_lshlrev_b32 v%d, 7, v%d' % (vT[1], vT[1]))
    p('v_lshl_add_u32 v%d, v%d, 4, v%d' % (vRD[0], vT[2], vT[1]))
    p('v_xor_b32 v%d, 64, v%d' % (vRD[1], vRD[0]))
    p('v_add_u32 v%d, s%d, v%d' % (vT[6], sXB, vRD[0]))
    p('v_add_u32 v%d, s%d, v%d' % (vT[7], sXB, vRD[1]))
    p('v_add_u32 v%d, s%d, v%d' % (vRD[0], sCB, vRD[0]))
    p('v_add_u32 v%d, s%d, v%d' % (vRD[1], sCB, vRD[1]))
    p('s_waitcnt vmcnt(%d)' % npf)
    for ch in range(7):
        for sp in range(2):
            for t in range(2):
                p('ds_read_b128 %s, v%d offset:%d' % (xfrag(2 * ch + sp, t), vT[6 + sp], ch * 4096 + t * 2048))
    p(staging_offsets(DC * 2))
    p('s_waitcnt lgkmcnt(0)')
    p('s_barrier')
    p('s_cmp_eq_u32 s%d, 3' % sW)
    p('s_cbranch_scc0 L_k1_w3c')
    p(dma_w(st0, 6, 14)[1:])
    p('L_k1_w3c:')
    pre = []
    for ps in range(PRE):
        r = eng.reads(stages[0], ps, ps); pre.append([x.tag for x in r]); p(r)
    for t in range(2):
        for s in range(14):
            p(mfma(vr(TMP + 4 * t), ar(4 * s), xfrag(s, t), '0' if s == 0 else vr(TMP + 4 * t)))
    p('s_nop 7')
    for t in range(2): p('v_mul_f32 v%d, %s, v%d' % (vT[t], hexf(-LOG2E), TMP + 4 * t))
    for t in range(2): p('v_exp_f32 v%d, v%d' % (vT[t], vT[t]))
    p('s_nop 0')
    for t in range(2): p('v_add_f32 v%d, 1.0, v%d' % (vT[t], vT[t]))
    for t in range(2): p('v_rcp_f32 v%d, v%d' % (vT[t], vT[t]))
    p('s_nop 0')
    for t in range(2):
        p('v_sub_f32 v%d, 1.0, v%d' % (vT[2 + t], vT[t]))
        p('v_max_f32 v%d, 0x0da24260, v%d' % (vT[2 + t], vT[2 + t]))
    for t in range(2): p('v_rcp_f32 v%d, v%d' % (vIO[t], vT[2 + t]))
    p('s_cmp_eq_u32 s%d, 0' % sH)
    p('s_cbranch_scc0 L_k1_nog')
    p('v_and_b32 v%d, 15, v%d' % (vT[4], vLANE))
    p('v_lshlrev_b32 v%d, 2, v%d' % (vT[4], vT[4]))
    p('s_lshl_b32 s%d, s%d, 7' % (sT0, sRB))
    p('s_add_u32 s%d, s%d, 0x%x' % (sT0, sT0, WS_G))
    p('buffer_store_dword v%d, v%d, s[%d:%d], s%d offen' % (vT[0], vT[4], SWS, SWS + 3, sT0))
    p('buffer_store_dword v%d, v%d, s[%d:%d], s%d offen offset:64' % (vT[1], vT[4], SWS, SWS + 3, sT0))
    p('v_mov_b32 v%d, 0' % vT[5])
    p('v_lshlrev_b32 v%d, 2, v%d' % (vT[6], vLANE))
    p('s_lshl_b32 s%d, s%d, 8' % (sT0, sRB))
    p('s_add_u32 s%d, s%d, 0x%x' % (sT0, sT0, WS_FL))
    p('buffer_store_dword v%d, v%d, s[%d:%d], s%d offen' % (vT[5], vT[6], SWS, SWS + 3, sT0))
    p('L_k1_nog:')
    p('s_waitcnt lgkmcnt(0)')
    if STAMP:
        p(stamp_ops())
    pend = []
    carry = None; g0 = g1 = None; issued = []; ctags = None
    loop_a = kv_stage('k', 0, SNX, ['s_add_u32 s%d, s%d, 128' % (sSOFF, sCOL)], 0)
    for n_, st in enumerate(stages):
        nxt = stages[n_ + 1] if n_ + 1 < len(stages) else loop_a
        nm = nslots(st) * 4
        streams = []
        d = []
        wd = dma_w(nxt)
        if 'nodma' in ABL and n_ < 8: wd = [x for x in wd if x.k != 'vmem'] + [I('buffer_load_dword v%d, v%d, s[%d:%d], 0 offen' % (vDUM, vL16, SX, SX + 3), tag=('wd', next_id()))]
        wtags = [x.tag for x in wd if x.tag]
        d += wd
        ds_ = spread('dma', d, nm, hi=0.40, dl=0.48)
        su = Stream('setup', prio=3)
        if n_ == 2:
            for x in doff_setup(14, H * D * 2): su.add(x, e=int(nm * 0.5), d=int(nm * 0.9))
        if n_ == 6:
            for x in doff_setup(16, H * D * 2): su.add(x, e=int(nm * 0.5), d=int(nm * 0.9))
        streams.append(su)
        cs = Stream('cload', prio=2)
        rs = []
        rd_pair = {1: 0, 2: 1, 3: 2, 4: 3, 5: 4, 6: 5, 8: 6, 9: 7}.get(n_)
        ld_pair = {0: 0, 1: 1, 2: 2, 3: 3, 4: 4, 5: 5, 6: 6, 8: 7}.get(n_)
        if rd_pair is not None and 'noc' not in ABL:
            rs = c_reads(eng, 2 * rd_pair) + c_reads(eng, 2 * rd_pair + 1)
            rs[0] = I(rs[0].t, tag=rs[0].tag, vneed=ctags)
            lo = 0.42 if n_ != 8 else 0.1
            for x in rs: cs.add(x, e=int(nm * lo), d=int(nm * (lo + 0.1)))
        if ld_pair is not None and 'noc' not in ABL:
            dm = staging_dma(SC, sCB, 0, 2 * ld_pair) + staging_dma(SC, sCB, 1, 2 * ld_pair + 1)
            ctags = [x.tag for x in dm if x.tag]
            if rs: dm[0] = I(dm[0].t, need=[y.tag for y in rs])
            for i_, x in enumerate(dm): ds_.add(x, e=int(nm * (0.56 + 0.16 * i_ / len(dm))), d=int(nm * 0.76))
        if USE_PF:
            pfl = []
            if n_ <= 4: pfl += pf_w(stages, n_ + 3)
            if n_ == 4: pfl += pf_kv_static(0)
            if n_ == 6: pfl += pf_kv_static(1)
            if n_ == 8: pfl += pf_kv_static(2)
            for x in pfl: ds_.add(x, e=int(nm * 0.76), d=int(nm * 0.84))
        streams.append(ds_)
        streams.append(cs)
        if carry is not None: streams.append(epi_stream(carry, nm - 24))
        newcarry = None
        if 4 <= n_ < 8: newcarry = epilogue('q', ACCU, ['s_add_u32 s%d, s%d, %d' % (sOUT, sQO, (n_ - 4) * 2048)])
        if n_ == 9: newcarry = epilogue('k', TMPKV, ['s_mov_b32 s%d, s%d' % (sOUT, sKO)], scale=True)
        if n_ == 1:
            g0 = gelu_stream(ACCG, 4, 'gelu'); g0.prio = 2; g0.items = [(6, dd, x) for (_, dd, x) in g0.items]
        if n_ == 2: ffn_finish(g0, ACCG, ACCU, 4, 0, 6)
        if n_ == 3:
            g1 = gelu_stream(TMP, 4, 'gelu1')
            tail1 = [(6, dd, x) for (_, dd, x) in g1.items]
            n0 = len(g0.items)
            g0.items += tail1
        if n_ == 4: ffn_finish(g0, TMP, ACCX, 4, 1, 6)
        if 1 <= n_ <= 9: streams.append(g0)
        seq, pre, pend, n = segment(eng, st, nxt, pre, streams, pend, wtags, issued)
        p(seq)
        if n_ == 3:
            left = len(g0.items) - len(tail1)
            if left > 0:
                head = Stream('x'); head.items = g0.items[:left]; g0.items = g0.items[left:]
                flush(p, head, issued)
            print('k1: first FFN group leftovers at end of stage 3:', max(left, 0))
        if n_ == 9:
            print('k1: second FFN group leftovers at end of stage 9:', len(g0.items))
            flush(p, g0, issued)
        carry = newcarry
    def kv_loop(kind, label, count, pre, pend):
        own = SWK if kind == 'k' else SWV
        p('s_movk_i32 s%d, %d' % (sCNT, count))
        p(label + ':')
        a = kv_stage(kind, 0, own, None, 0)
        b = kv_stage(kind, 1, own, ['s_add_u32 s%d, s%d, s%d' % (sSOFF, sCOL, sGRP), 's_add_u32 s%d, s%d, %d' % (sSOFF, sSOFF, 512 * 8192)], 1)
        nx = ['s_cmp_eq_u32 s%d, 1' % sCNT, 's_add_u32 s%d, s%d, 128' % (sNXO, sGRP)]
        nx = ['s_add_u32 s%d, s%d, 128' % (sNXO, sGRP), 's_add_u32 s%d, s%d, s%d' % (sNXO, sNXO, sCOL)]
        if kind == 'k':
            nx += [GL('s_cmp_eq_u32 s%d, 1' % sCNT, 's_cselect_b32 s%d, s%d, s%d' % (sSOFF, sCOL, sNXO),
                     's_cselect_b32 s%d, s%d, s%d' % (SNX, SWV, SWK), 's_cselect_b32 s%d, s%d, s%d' % (SNX + 1, SWV + 1, SWK + 1))]
        else:
            nx += [GL('s_cmp_eq_u32 s%d, 1' % sCNT, 's_cselect_b32 s%d, 0x10000000, s%d' % (sSOFF, sNXO))]
        c = kv_stage(kind, 0, SNX, nx, 0)
        cout = epilogue(kind, TMPKV, [], scale=(kind == 'k'))
        db = dma_w(b)
        dstream = spread('dma', db, 128)
        if USE_PF:
            for x in pf_kv_loop(): dstream.add(x, e=66, d=90)
        seq, pre1, pend1, n = segment(eng, a, b, pre, [dstream, epi_stream(cout, 110)], pend, [x.tag for x in db if x.tag], [])
        p(seq)
        d = dma_w(c)
        so = Stream('sout', prio=1)
        for x in epi_soff(kind): so.add(I(x), e=70, d=100)
        seq, pre2, pend2, n = segment(eng, b, c, pre1, [spread('dma', d, 128), so], pend1, [x.tag for x in d if x.tag], [])
        p(seq)
        p('s_add_u32 s%d, s%d, 1' % (sGI, sGI))
        p('s_add_u32 s%d, s%d, 128' % (sGRP, sGRP))
        p('s_sub_u32 s%d, s%d, 1' % (sCNT, sCNT))
        p('s_cmp_lg_u32 s%d, 0' % sCNT)
        p('s_cbranch_scc1 %s' % label)
        return cout
    flat = [t for grp in pre for t in grp]
    p('s_mov_b32 s%d, 0x%x' % (SPF + 2, SZ['wuk']))
    p('s_mov_b32 s%d, 0x20000' % (SPF + 3))
    p('s_mov_b32 s%d, s%d' % (SPF, SWK))
    p('s_mov_b32 s%d, s%d' % (SPF + 1, SWK + 1))
    p('s_movk_i32 s%d, 1' % sGI)
    p('s_mov_b32 s%d, s%d' % (sOUT, sKO))
    p('s_movk_i32 s%d, 128' % sGRP)
    cout = kv_loop('k', 'L_k1_kloop', 3, pre, flat)
    p('s_nop 7')
    p([x for (_, x) in cout])
    p('s_mov_b32 s%d, 0x10000000' % sOUT)
    p('s_movk_i32 s%d, 0' % sGRP)
    cout = kv_loop('v', 'L_k1_vloop', 4, pre, flat)
    p('s_nop 7')
    p([x for (_, x) in cout])
    if USE_PF:
        srd(p, SWQ, kp2('wo'), SZ['wo']); srd(p, SWG, kp2('wd'), SZ['wd'])
        p('s_mul_i32 s%d, s2, %d' % (sT0, 14336))
        p('s_mul_i32 s%d, s%d, %d' % (sT1, sW, 3584))
        p('s_add_u32 s%d, s%d, s%d' % (sT0, sT0, sT1))
        p('v_lshlrev_b32 v%d, 7, v%d' % (vT[0], vLANE))
        p('v_mov_b32 v%d, 0x7ff00000' % vT[3])
        p('v_cmp_gt_u32 vcc, 28, v%d' % vLANE)
        p('s_mul_i32 s%d, s2, %d' % (sT2, 6272))
        p('s_mul_i32 s%d, s%d, %d' % (sT1, sW, 1568))
        p('v_cndmask_b32 v%d, v%d, v%d, vcc' % (vT[1], vT[3], vT[0]))
        p('s_add_u32 s%d, s%d, s%d' % (sT2, sT2, sT1))
        p('v_cmp_gt_u32 vcc, 14, v%d' % vLANE)
        p(pf(vT[1], SWQ, sT0))
        p('s_nop 0')
        p('v_cndmask_b32 v%d, v%d, v%d, vcc' % (vT[1], vT[3], vT[0]))
        p(pf(vT[1], SWG, sT2))
    if STAMP:
        p('s_waitcnt vmcnt(0) lgkmcnt(0)')
        p(stamp_ops())
        p('s_waitcnt lgkmcnt(0)')
        p(stamp_ops())
        p('s_memrealtime s[92:93]')
        p('s_waitcnt lgkmcnt(0)')
        p(stamp_ops()[:3])
    p('L_k1_end:')
    p('s_endpgm')
    return p

if __name__ == '__main__':
    p = build()
    p.seq = fix_m0(p.seq)
    errs = lint(p.seq, 'k1')
    for e in errs[:30]: print(e)
    print(len(p.seq), 'instructions;', len(errs), 'lint errors')
    open('k1_body.s', 'w').write(p.text())
```

```python
from fw import *
from common import *

NAME = 'k2_attn_kernel'
STAMP = False
WS_DBG = 0x0c000000 + (1 << 20)
sW, sH, sJ, sROLE = 4, 5, 6, 7
SWS, SWO, SWD = 8, 12, 16
sKVB, sKB, sN, sMK, sB = 20, 21, 22, 23, 24
sM0, sT0, sT1, sT2, sT3 = 25, 26, 27, 28, 29
sPHASE, sCLAMP, sTHR, sRB, sSO = 30, 31, 32, 33, 34
sKB0, sCNT, sPM, sFL, sOUT = 35, 36, 37, 38, 39
sMSK = 40
sRET = 48
sM0W, sSOA, sSOB, sPO = 50, 51, 52, 53
sM0L, sM0A, sM0B = 54, 55, 56
sPFAT, sSLOT = 57, 58
sKPTR = 64
O0 = 0
S0, S1, E0, P0, P1, NEGM = 128, 144, 160, 176, 184, 192
vL = [200, 201]; vTS = [202, 203]; vM = [204, 205]
vCUR, vPRV, vL16, vDK, vLANE, vRG, vNINF = 206, 207, 208, 209, 210, 211, 212
vG = [213, 214]
vDKP = None
vT = list(range(215, 231))
vPA = [228, 230 - 4]
vVA = [231, 232, 233, 234]; vVB = [235, 236, 237, 238]
vDO = list(range(239, 251))
vST = [251, 252, 253, 254]
vDUM = 255
QF, KA_, KB_, VR, HF, WR = 0, 64, 96, 128, 160, 192
PK_ADD = False
ST_FLAGS = ''
vPFO, vPFD = 225, 230
vDP = [221, 222, 223, 224]

def vr(b, n=4): return 'v[%d:%d]' % (b, b + n - 1)
def ar(b, n=4): return 'a[%d:%d]' % (b, b + n - 1)
def mfma(d, a, b, c): return 'v_mfma_f32_16x16x32_bf16 %s, %s, %s, %s' % (d, a, b, c)
def Oacc(dt, qt): return O0 + 8 * dt + 4 * qt
def Sacc(buf, kt, qt): return (S0 if buf == 0 else S1) + 8 * kt + 4 * qt
def Ereg(kt, qt): return E0 + 8 * kt + 4 * qt
def Preg(buf, qt): return (P0 if buf == 0 else P1) + 4 * qt

def srd(p, base, ptr, size):
    p('s_mov_b32 s%d, s%d' % (base, ptr))
    p('s_and_b32 s%d, s%d, 0xffff' % (base + 1, ptr + 1))
    p('s_mov_b32 s%d, 0x%x' % (base + 2, size))
    p('s_mov_b32 s%d, 0x20000' % (base + 3))

_uid = [0]
def rd(dst, addr, off):
    _uid[0] += 1
    return I('ds_read_b128 %s, v%d offset:%d' % (dst, addr, off), tag=('r', _uid[0]))

def piece(lds_off, src_reg, src_add, m0reg=None):
    r = [I('s_add_u32 s%d, s%d, %d' % (sSO, src_reg, src_add)), I('s_add_u32 m0, s%d, %d' % (sM0 if m0reg is None else m0reg, lds_off))]
    for i in range(4):
        r.append(I('buffer_load_dwordx4 v%d, s[%d:%d], s%d offen offset:%d lds' % (vDK, SWS, SWS + 3, sSO, i * 1024)))
    return r

def qk_mfmas(sbuf, tagsA, tagsB):
    mf = []
    for kt in range(2):
        for qt in range(2):
            for s in range(8):
                d = vr(Sacc(sbuf, kt, qt))
                c = vr(NEGM + 4 * qt) if s == 0 else d
                need = ()
                if qt == 0 and kt == 0 and s % 4 == 0: need = tagsA[s:s + 4] if tagsA else ()
                if qt == 0 and kt == 1 and s == 0: need = tagsB if tagsB else ()
                mf.append(I(mfma(d, ar((KA_ if kt == 0 else KB_) + 4 * s), ar(QF + 32 * qt + 4 * s), c), need=need))
    return mf

def pv_mfmas(pbuf, vtags):
    mf = []
    for dt in range(16):
        for qt in range(2):
            d = vr(Oacc(dt, qt))
            need = ()
            if qt == 0 and dt % 4 == 0: need = [t for t in vtags[dt:dt + 4] if t]
            mf.append(I(mfma(d, ar(VR + 4 * (dt % 8)), vr(Preg(pbuf, qt)), d), need=need))
    return mf

def softmax_parts(sb):
    p1, p2 = [], []
    for qt in range(2):
        for i in range(4): p1.append(I('v_exp_f32 v%d, v%d' % (Ereg(0, qt) + i, Sacc(sb, 0, qt) + i)))
    for qt in range(2):
        e = Ereg(0, qt)
        if PK_ADD:
            p1.append(I('v_pk_add_f32 v[%d:%d], v[%d:%d], v[%d:%d]' % (vPA[qt], vPA[qt] + 1, e, e + 1, e + 2, e + 3)))
        else:
            p1.append(I('v_add_f32 v%d, v%d, v%d' % (vTS[qt], e, e + 1)))
            p2.append(I('v_add_f32 v%d, v%d, v%d' % (vTS[qt], vTS[qt], e + 2)))
            p2.append(I('v_add_f32 v%d, v%d, v%d' % (vTS[qt], vTS[qt], e + 3)))
    pk0 = []
    for qt in range(2):
        e = Ereg(0, qt)
        pk0.append(I('v_cvt_pk_bf16_f32 v%d, v%d, v%d' % (Preg(sb, qt), e, e + 1)))
        pk0.append(I('v_cvt_pk_bf16_f32 v%d, v%d, v%d' % (Preg(sb, qt) + 1, e + 2, e + 3)))
    p1 += pk0
    ex = []
    for qt in range(2):
        for i in range(4): ex.append(I('v_exp_f32 v%d, v%d' % (Ereg(1, qt) + i, Sacc(sb, 1, qt) + i)))
    adds0 = p2; p2 = []
    while ex or adds0:
        if ex: p2.append(ex.pop(0))
        if ex: p2.append(ex.pop(0))
        if adds0: p2.append(adds0.pop(0))
    for qt in range(2):
        e = Ereg(1, qt)
        if PK_ADD:
            p2.append(I('v_pk_add_f32 v[%d:%d], v[%d:%d], v[%d:%d]' % (vPA[qt], vPA[qt] + 1, vPA[qt], vPA[qt] + 1, e, e + 1)))
            p2.append(I('v_pk_add_f32 v[%d:%d], v[%d:%d], v[%d:%d]' % (vPA[qt], vPA[qt] + 1, vPA[qt], vPA[qt] + 1, e + 2, e + 3)))
            p2.append(I('v_add_f32 v%d, v%d, v%d' % (vTS[qt], vPA[qt], vPA[qt] + 1)))
        else:
            for i in range(4): p2.append(I('v_add_f32 v%d, v%d, v%d' % (vTS[qt], vTS[qt], e + i)))
        p2.append(I('v_cvt_pk_bf16_f32 v%d, v%d, v%d' % (Preg(sb, qt) + 2, e, e + 1)))
        p2.append(I('v_cvt_pk_bf16_f32 v%d, v%d, v%d' % (Preg(sb, qt) + 3, e + 2, e + 3)))
    p2.append(I('v_max_f32 v%d, v%d, v%d' % (vT[0], vTS[0], vTS[1])))
    p2.append(I('v_cmp_lt_f32 vcc, s%d, v%d' % (sTHR, vT[0])))
    return p1, p2

def l_update():
    return [I('v_add_f32 v%d, v%d, v%d' % (vL[qt], vL[qt], vTS[qt])) for qt in range(2)]

def mask_block(p, sb, label, back):
    p(label + ':')
    p('s_nop 7')
    p('s_lshl_b32 s%d, s%d, 5' % (sT0, sMK))
    p('v_add_u32 v%d, s%d, v%d' % (vT[1], sT0, vRG))
    p('v_add_u32 v%d, 16, v%d' % (vT[2], vT[1]))
    for kt in range(2):
        for qt in range(2):
            for i in range(4):
                p('v_cmp_gt_i32 s[%d:%d], %d, v%d' % (sMSK + 2 * i, sMSK + 2 * i + 1, 16 * kt + i, vT[1 + qt]))
            for i in range(4):
                r = Sacc(sb, kt, qt) + i
                p('v_cndmask_b32 v%d, v%d, v%d, s[%d:%d]' % (r, r, vNINF, sMSK + 2 * i, sMSK + 2 * i + 1))
    p('s_branch %s' % back)

def allreduce(p, op, regs, tmp):
    for r, t in zip(regs, tmp): p('v_mov_b32 v%d, v%d' % (t, r))
    p('s_nop 1')
    for r, t in zip(regs, tmp): p('v_permlane32_swap_b32 v%d, v%d' % (r, t))
    p('s_nop 1')
    for r, t in zip(regs, tmp): p('%s v%d, v%d, v%d' % (op, r, r, t))
    for r, t in zip(regs, tmp): p('v_mov_b32 v%d, v%d' % (t, r))
    p('s_nop 1')
    for r, t in zip(regs, tmp): p('v_permlane16_swap_b32 v%d, v%d' % (r, t))
    p('s_nop 1')
    for r, t in zip(regs, tmp): p('%s v%d, v%d, v%d' % (op, r, r, t))

def slow_path(p, sb, label):
    ob = 1 - sb
    p(label + ':')
    p('s_nop 7')
    d = [vT[2], vT[3]]
    for qt in range(2):
        a, b = Sacc(sb, 0, qt), Sacc(sb, 1, qt)
        p('v_max3_f32 v%d, v%d, v%d, v%d' % (d[qt], a, a + 1, a + 2))
        p('v_max3_f32 v%d, v%d, v%d, v%d' % (d[qt], d[qt], a + 3, b))
        p('v_max3_f32 v%d, v%d, v%d, v%d' % (d[qt], d[qt], b + 1, b + 2))
        p('v_max_f32 v%d, v%d, v%d' % (d[qt], d[qt], b + 3))
    allreduce(p, 'v_max_f32', d, [vT[4], vT[5]])
    for qt in range(2): p('v_max_f32 v%d, s%d, v%d' % (d[qt], sCLAMP, d[qt]))
    f = [vT[4], vT[5]]
    for qt in range(2):
        p('v_add_f32 v%d, v%d, v%d' % (vM[qt], vM[qt], d[qt]))
        p('v_sub_f32 v%d, 0, v%d' % (f[qt], d[qt]))
        p('v_min_f32 v%d, 0, v%d' % (f[qt], f[qt]))
    for qt in range(2): p('v_exp_f32 v%d, v%d' % (f[qt], f[qt]))
    for qt in range(2):
        for i in range(4): p('v_sub_f32 v%d, 0, v%d' % (NEGM + 4 * qt + i, vM[qt]))
    for qt in range(2): p('v_mul_f32 v%d, v%d, v%d' % (vL[qt], vL[qt], f[qt]))
    for buf in (sb, ob):
        for kt in range(2):
            for qt in range(2):
                for i in range(4):
                    r = Sacc(buf, kt, qt) + i
                    p('v_sub_f32 v%d, v%d, v%d' % (r, r, d[qt]))
    p1, p2 = softmax_parts(sb)
    if sb == 0:
        p('s_cmp_eq_u32 s%d, 1' % sT3)
        p('s_cbranch_scc0 %s_full' % label)
        p([I(x.t) for x in p1])
        p('s_branch L_k2_pro_back')
        p(label + '_full:')
    for dt in range(16):
        for qt in range(2):
            for i in range(4):
                r = Oacc(dt, qt) + i
                p('v_mul_f32 v%d, v%d, v%d' % (r, r, f[qt]))
    p(p1); p('s_nop 0'); p(p2[:-2])
    p('s_nop 1')
    p('s_branch %s_back' % label)

def stamp_ops():
    return [I('v_mov_b32 v%d, s92' % vDUM), I('buffer_store_dword v%d, off, s[%d:%d], s94' % (vDUM, SWS, SWS + 3)), I('s_add_u32 s94, s94, 4'), I('s_memtime s[92:93]')]

PRE = 3
class Eng:
    def __init__(self): self.sigma = 0; self.uid = 0
    def reads(self, buf, slot, sg):
        kp, u = divmod(slot, 4)
        va = vVA if buf == 0 else vVB
        res = []
        for hf in range(2):
            s = 2 * kp + hf
            b = WR + 8 * (sg % 4) + 4 * hf
            for j in range(2):
                self.uid += 1
                res.append(I('ds_read_b64_tr_b16 a[%d:%d], v%d offset:%d' % (b + 2 * j, b + 2 * j + 1, va[u], s * 4096 + 2048 * j), tag=('w', self.uid)))
        return res

ACC, PK = 128, 160
def acc(u, t): return ACC + 8 * u + 4 * t
def bfrag(s, t): return vr(16 * s + 4 * t) if s < 8 else ar(HF + 8 * (s - 8) + 4 * t)

def proj_dma():
    r = []
    for i in range(8):
        if i % 4 == 0: r.append(I('s_add_u32 m0, s%d, %d' % (sM0A, (i // 4) * 4096)))
        r.append(I('buffer_load_dwordx4 v%d, s[%d:%d], s%d offen offset:%d lds' % (vDO[i], SWO, SWO + 3, sSOA, (i % 4) * 1024)))
    r.append(I('s_mov_b32 m0, s%d' % sM0B))
    for i in range(4):
        r.append(I('buffer_load_dwordx4 v%d, s[%d:%d], s%d offen offset:%d lds' % (vDO[8 + i], SWD, SWD + 3, sSOB, i * 1024)))
    return r

def proj_segment(eng, buf, pre_tags, streams, pending):
    S_ = 24; sg0 = eng.sigma
    mf = []; rdS = Stream('wreads', prio=5, pace=1)
    tags = {i: pre_tags[i] for i in range(PRE)}
    for slot in range(S_):
        if slot + PRE < S_:
            r = eng.reads(buf, slot + PRE, sg0 + slot + PRE)
            tags[slot + PRE] = [x.tag for x in r]
            for q, x in enumerate(r): rdS.add(x, e=4 * slot - 1, d=4 * slot + q)
    for slot in range(S_):
        kp, u = divmod(slot, 4)
        for t in range(2):
            for hf in range(2):
                s = 2 * kp + hf
                b = WR + 8 * ((sg0 + slot) % 4) + 4 * hf
                d = vr(acc(u, t))
                need = ()
                if t == 0 and hf == 0:
                    need = list(tags[slot])
                    if slot % 2 == 0 and slot + 1 < S_ and slot + 1 >= PRE: need += tags[slot + 1]
                dd = vr(PK + 8 * u + 4 * t) if s == 11 else d
                mf.append(I(mfma(dd, ar(b), bfrag(s, t), '0' if s == 0 else d), need=need))
    n = len(mf)
    bar_gap = 4 * (S_ - PRE) + 3
    bs = Stream('bar', prio=9)
    bs.add(I('s_waitcnt vmcnt(0) lgkmcnt(0)'), e=bar_gap, d=bar_gap)
    bs.add(I('s_barrier'), e=bar_gap, d=bar_gap)
    nxt = []; k = 0
    for ps in range(PRE):
        r = eng.reads(1 - buf, ps, sg0 + S_ + ps)
        nxt.append([x.tag for x in r])
        for q, x in enumerate(r):
            e = bar_gap + 1 + k // 2 if ps < 2 else 4 * (S_ - 1) + q - 1
            k += 1
            e = min(max(e, bar_gap + 1), n - 1)
            bs.add(x, e=e, d=e)
    eng.sigma = sg0 + S_
    seq = pack(mf, [rdS, bs] + streams, budget=8)
    seq, pend = insert_lgkm_waits(seq, pending)
    return seq, nxt, pend

def proj_epilogue():
    ops = []; last = -1
    for p_ in range(2):
        for t in range(2):
            dst = PK + 8 * (2 * p_) + 4 * t
            for half in range(2):
                u = 2 * p_ + half; a0 = PK + 8 * u + 4 * t
                last = max(last, 4 * u + 2 * t + 1 - 16 + 6)
                ops.append((last, I('v_cvt_pk_bf16_f32 v%d, v%d, v%d' % (dst + 2 * half, a0, a0 + 1))))
                ops.append((last, I('v_cvt_pk_bf16_f32 v%d, v%d, v%d' % (dst + 2 * half + 1, a0 + 2, a0 + 3))))
            ops.append((last, I('buffer_store_dwordx4 %s, v%d, s[%d:%d], s%d offen%s' % (vr(dst), vST[2 * p_ + t], SWS, SWS + 3, sOUT, ST_FLAGS))))
    return ops

def spread(name, ins, lo, hi, dl, prio=3):
    s = Stream(name, prio=prio)
    for i, x in enumerate(ins): s.add(x, e=int(lo + (hi - lo) * i / len(ins)), d=dl)
    return s

def lpiece(i):
    r = [I('s_add_u32 m0, s%d, %d' % (sM0L, i * 16384))]
    for k in range(4):
        r.append(I('buffer_load_dwordx4 v%d, s[%d:%d], s%d offen offset:%d lds' % (vDP[i], SWS, SWS + 3, sT2, k * 1024)))
    return r

def half_iter(par, ka_in, ka_out):
    sb_next = 1 - par
    kprev = vPRV if par == 0 else vCUR
    koff = 32768 if par == 0 else 0
    kb_reads = [rd(ar(KB_ + 4 * s), kprev, koff + (8 + s) * 1024) for s in range(8)]
    mfA = qk_mfmas(sb_next, [x.tag for x in ka_in], [x.tag for x in kb_reads])
    sK = Stream('kb', prio=6)
    for s, x in enumerate(kb_reads): sK.add(x, e=s, d=s + 3)
    p1_next, _ = softmax_parts(sb_next)
    _, p2 = softmax_parts(par)
    sS = Stream('soft', prio=4)
    for i, x in enumerate(p2): sS.add(x, e=-1 + i // 3, d=30)
    voff = 16384 if par == 0 else 49152
    v_reads = [rd(ar(VR + 4 * (dt % 8)), vCUR, voff + dt * 1024) for dt in range(16)]
    sV = Stream('vpre', prio=7)
    if par == 0:
        sV.add(I('s_waitcnt vmcnt(0) lgkmcnt(0)'), e=20, d=20)
        sV.add(I('s_barrier'), e=20, d=20)
        if STAMP:
            for x in stamp_ops(): sV.add(x, e=20, d=20)
        sV.add(GL('s_cmp_eq_u32 s%d, s%d' % (sCNT, sPFAT), 's_cbranch_scc1 L_k2_pf', 'L_k2_pf_back:'), e=21, d=21)
    for dt in range(6): sV.add(v_reads[dt], e=22 + dt, d=min(30, 24 + dt))
    streamsA = [sK, sS, sV]
    mfB = pv_mfmas(par, [x.tag for x in v_reads])
    sV2 = Stream('v', prio=7)
    for dt in range(6, 16):
        e = -1 + (dt - 6) if dt < 8 else 2 * (dt - 8) + 1
        sV2.add(v_reads[dt], e=e, d=e + 2)
    sKa = Stream('ka', prio=5)
    for s, x in enumerate(ka_out): sKa.add(x, e=13 + 2 * s, d=15 + 2 * s)
    sM = Stream('mask', prio=8)
    lab = 'L_k2_mask%d' % sb_next
    for x in l_update(): sM.add(x, e=0, d=2)
    sM.add(I('s_sub_i32 s%d, s%d, 1' % (sMK, sMK)), e=1, d=3)
    sM.add(GL('s_cmp_le_i32 s%d, 0' % sMK, 's_cbranch_scc1 %s' % lab, lab + '_back:'), e=3, d=3)
    for i, x in enumerate(p1_next): sM.add(x, e=4 + i, d=31)
    return mfA, streamsA, mfB, [sV2, sKa, sM]

def finalize_plain(p, sc):
    for s in range(8):
        for qt in range(2):
            a, b = Oacc(2 * s, qt), Oacc(2 * s + 1, qt)
            for i in range(4): p('v_mul_f32 v%d, v%d, v%d' % (a + i, a + i, sc[qt]))
            for i in range(4): p('v_mul_f32 v%d, v%d, v%d' % (b + i, b + i, sc[qt]))
            p('v_cvt_pk_bf16_f32 v%d, v%d, v%d' % (a, a, a + 1))
            p('v_cvt_pk_bf16_f32 v%d, v%d, v%d' % (a + 1, a + 2, a + 3))
            p('v_cvt_pk_bf16_f32 v%d, v%d, v%d' % (a + 2, b, b + 1))
            p('v_cvt_pk_bf16_f32 v%d, v%d, v%d' % (a + 3, b + 2, b + 3))

def build():
    p = Prog()
    p('%s:' % NAME)
    p('s_cmp_ge_u32 s2, 256')
    p('s_cbranch_scc1 L_k2_end')
    p('s_load_dwordx16 s[%d:%d], s[0:1], 0' % (sKPTR, sKPTR + 15))
    p('s_load_dwordx8 s[%d:%d], s[0:1], 64' % (sKPTR + 16, sKPTR + 23))
    p('s_load_dwordx4 s[%d:%d], s[0:1], 96' % (sKPTR + 24, sKPTR + 27))
    p('s_getpc_b64 s[92:93]')
    p('s_mov_b32 s94, 0x8000')
    p('s_mov_b32 s95, 0x20000')
    p('v_lshlrev_b32 v3, 7, v0')
    p('buffer_load_dword v%d, v3, s[92:95], 0 offen' % vDUM)
    p('v_lshrrev_b32 v3, 6, v0')
    p('v_and_b32 v%d, 63, v0' % vLANE)
    p('v_readfirstlane_b32 s%d, v3' % sW)
    p('s_and_b32 s3, s2, 7')
    p('s_lshr_b32 s%d, s2, 3' % sT0)
    p('s_and_b32 s%d, s%d, 1' % (sT1, sT0))
    p('s_lshl_b32 s3, s3, 1')
    p('s_add_u32 s%d, s3, s%d' % (sH, sT1))
    p('s_lshr_b32 s%d, s%d, 1' % (sT0, sT0))
    p('s_lshr_b32 s%d, s%d, 3' % (sROLE, sT0))
    p('s_and_b32 s%d, s%d, 7' % (sJ, sT0))
    p('s_mov_b32 s%d, s%d' % (sSLOT, sT0))
    p('v_lshlrev_b32 v%d, 4, v%d' % (vL16, vLANE))
    p('s_lshl_b32 s%d, s%d, 12' % (sM0, sW))
    p('v_add_u32 v%d, s%d, v%d' % (vDK, sM0, vL16))
    p('s_lshl_b32 s%d, s%d, 13' % (sM0W, sW))
    p('s_lshl_b32 s%d, s%d, 21' % (sKVB, sH))
    p('v_and_b32 v%d, 15, v%d' % (vT[0], vLANE))
    p('v_lshrrev_b32 v%d, 4, v%d' % (vT[1], vLANE))
    p('v_lshlrev_b32 v%d, 2, v%d' % (vT[2], vT[1]))
    p('v_sub_u32 v%d, v%d, v%d' % (vRG, vT[0], vT[2]))
    p('v_mov_b32 v%d, 0xff800000' % vNINF)
    p('s_mov_b32 s%d, %s' % (sTHR, hexf(2.0 ** 20)))
    p('v_bfe_u32 v%d, v%d, 2, 2' % (vT[2], vLANE))
    p('v_and_b32 v%d, 3, v%d' % (vT[3], vLANE))
    p('v_lshl_add_u32 v%d, v%d, 2, v%d' % (vT[4], vT[1], vT[2]))
    p('v_bfe_u32 v%d, v%d, 1, 2' % (vT[5], vT[4]))
    p('v_bfe_u32 v%d, v%d, 3, 1' % (vT[6], vT[4]))
    p('v_lshlrev_b32 v%d, 1, v%d' % (vT[6], vT[6]))
    p('v_xor_b32 v%d, v%d, v%d' % (vT[5], vT[5], vT[6]))
    p('v_lshlrev_b32 v%d, 7, v%d' % (vT[4], vT[4]))
    p('v_lshl_add_u32 v%d, v%d, 3, v%d' % (vT[4], vT[3], vT[4]))
    for v in range(4):
        p('v_xor_b32 v%d, %d, v%d' % (vT[6], v, vT[5]))
        p('v_lshl_add_u32 v%d, v%d, 5, v%d' % (vVA[v], vT[6], vT[4]))
        p('v_add_u32 v%d, 0x10000, v%d' % (vVB[v], vVA[v]))
    p('v_lshrrev_b32 v%d, 3, v%d' % (vT[0], vLANE))
    p('v_mul_u32_u24 v%d, 896, v%d' % (vT[1], vT[0]))
    p('v_bfe_u32 v%d, v%d, 4, 2' % (vT[2], vLANE))
    p('v_bfe_u32 v%d, v%d, 1, 2' % (vT[3], vLANE))
    p('v_xor_b32 v%d, v%d, v%d' % (vT[2], vT[2], vT[3]))
    p('v_and_b32 v%d, 1, v%d' % (vT[3], vLANE))
    p('v_lshl_add_u32 v%d, v%d, 4, v%d' % (vT[1], vT[3], vT[1]))
    p('v_lshl_add_u32 v%d, v%d, 5, v%d' % (vT[4], vT[2], vT[1]))
    p('v_xor_b32 v%d, 2, v%d' % (vT[2], vT[2]))
    p('v_lshl_add_u32 v%d, v%d, 5, v%d' % (vT[5], vT[2], vT[1]))
    p('s_mul_i32 s%d, s%d, %d' % (sT0, sW, 64 * 896))
    p('s_mul_i32 s%d, s%d, %d' % (sT1, sW, 32 * 896))
    for i in range(8):
        p('v_add_u32 v%d, 0x%x, v%d' % (vDO[i], 8 * i * 896 - (i % 4) * 1024, vT[4 + i % 2]))
        p('v_add_u32 v%d, s%d, v%d' % (vDO[i], sT0, vDO[i]))
    for i in range(4):
        p('v_add_u32 v%d, 0x%x, v%d' % (vDO[8 + i], 8 * i * 896 - i * 1024, vT[4 + i % 2]))
        p('v_add_u32 v%d, s%d, v%d' % (vDO[8 + i], sT1, vDO[8 + i]))
    for i in range(4): p('v_add_u32 v%d, 0x%x, v%d' % (vST[i], (i // 2) * 32768 + (i % 2) * 16384, vL16))
    p('s_lshl_b32 s%d, s%d, 3' % (sT0, sH))
    p('s_add_u32 s%d, s%d, s%d' % (sT0, sT0, sJ))
    p('s_lshl_b32 s%d, s%d, 7' % (sFL, sT0))
    p('s_add_u32 s%d, s%d, 0x%x' % (sFL, sFL, WS_FL))
    p('s_lshl_b32 s%d, s%d, 2' % (sT0, sT0))
    p('s_add_u32 s%d, s%d, s%d' % (sT0, sT0, sW))
    p('s_mul_i32 s%d, s%d, %d' % (sPM, sT0, 17 * 1024))
    p('s_add_u32 s%d, s%d, 0x%x' % (sPM, sPM, WS_PM))
    p('s_waitcnt lgkmcnt(0)')
    kp = lambda n: sKPTR + KA[n] // 4
    srd(p, SWS, kp('ws'), SZ['ws']); srd(p, SWO, kp('wo'), SZ['wo']); srd(p, SWD, kp('wd'), SZ['wd'])
    if STAMP:
        p('s_lshl_b32 s94, s2, 2')
        p('s_add_u32 s94, s94, s%d' % sW)
        p('s_lshl_b32 s94, s94, 8')
        p('s_add_u32 s94, s94, 0x%x' % WS_DBG)
        p('s_memrealtime s[92:93]')
        p('s_waitcnt lgkmcnt(0)')
        p(stamp_ops())
        p('s_waitcnt lgkmcnt(0)')
    p('s_sub_u32 s%d, 15, s%d' % (sB, sJ))
    p('s_lshl_b32 s%d, s%d, 2' % (sT0, sJ))
    p('s_sub_u32 s%d, 30, s%d' % (sT0, sT0))
    p('s_cmp_eq_u32 s%d, 0' % sROLE)
    p('s_cselect_b32 s%d, 34, 0' % sKB0)
    p('s_cselect_b32 s%d, s%d, 34' % (sN, sT0))
    p('s_mov_b32 s%d, 0' % sPHASE)
    p('L_k2_seg:')
    p('s_lshl_b32 s%d, s%d, 2' % (sRB, sB))
    p('s_add_u32 s%d, s%d, s%d' % (sRB, sRB, sW))
    p('s_sub_u32 s%d, s%d, s%d' % (sMK, sRB, sKB0))
    p('s_lshl_b32 s%d, s%d, 15' % (sKB, sKB0))
    p('s_add_u32 s%d, s%d, s%d' % (sKB, sKB, sKVB))
    p(piece(65536, sKB, 0))
    p('s_lshl_b32 s%d, s%d, 6' % (sT0, sH))
    p('s_add_u32 s%d, s%d, s%d' % (sT0, sT0, sRB))
    p('s_lshl_b32 s%d, s%d, 14' % (sT0, sT0))
    p('s_add_u32 s%d, s%d, 0x%x' % (sT0, sT0, WS_Q))
    for q4 in range(4):
        for i in range(4):
            p('buffer_load_dwordx4 %s, v%d, s[%d:%d], s%d offen offset:%d' % (ar(QF + 16 * q4 + 4 * i), vL16, SWS, SWS + 3, sT0, i * 1024))
        if q4 < 3: p('s_add_u32 s%d, s%d, 4096' % (sT0, sT0))
    p(piece(65536 + 32768, sKB, 32768))
    p(piece(16384, sKB, 16384)); p(piece(0, sKB, 65536)); p(piece(49152, sKB, 49152)); p(piece(32768, sKB, 98304))
    for r in range(128): p('v_mov_b32 v%d, 0' % (O0 + r))
    for r in range(8): p('v_mov_b32 v%d, 0' % (NEGM + r))
    for qt in range(2):
        p('v_mov_b32 v%d, 0' % vL[qt]); p('v_mov_b32 v%d, 0' % vM[qt])
    for i, off in enumerate((65536, 16384, 98304, 49152)): p('v_add_u32 v%d, 0x%x, v%d' % (vDP[i], off, vDK))
    p('v_mov_b32 v%d, v%d' % (vCUR, vL16))
    p('v_add_u32 v%d, 0x10000, v%d' % (vPRV, vL16))
    p('s_add_u32 s%d, s%d, 0x10000' % (sM0L, sM0))
    p('s_lshr_b32 s%d, s%d, 1' % (sCNT, sN))
    p('s_min_u32 s%d, s%d, 3' % (sPFAT, sCNT))
    p('s_add_u32 s%d, s%d, s%d' % (sT0, sROLE, sPHASE))
    p('s_cmp_eq_u32 s%d, 0' % sT0)
    p('s_cselect_b32 s%d, 0xffff, s%d' % (sPFAT, sPFAT))
    p('s_lshl_b32 s%d, s%d, 2' % (sT0, sSLOT))
    p('s_add_u32 s%d, s%d, s%d' % (sT0, sT0, sW))
    p('s_mul_i32 s%d, s%d, %d' % (sT1, sT0, 28 * 128))
    p('v_lshlrev_b32 v%d, 7, v%d' % (vT[0], vLANE))
    p('v_mov_b32 v%d, 0x7ff00000' % vT[1])
    p('v_cmp_gt_u32 vcc, 28, v%d' % vLANE)
    p('v_add_u32 v%d, s%d, v%d' % (vT[2], sT1, vT[0]))
    p('s_mul_i32 s%d, s%d, %d' % (sT1, sT0, 14 * 128))
    p('v_cndmask_b32 v%d, v%d, v%d, vcc' % (vPFO, vT[1], vT[2]))
    p('v_cmp_gt_u32 vcc, 14, v%d' % vLANE)
    p('v_add_u32 v%d, s%d, v%d' % (vT[2], sT1, vT[0]))
    p('s_nop 0')
    p('v_cndmask_b32 v%d, v%d, v%d, vcc' % (vPFD, vT[1], vT[2]))
    p('s_waitcnt vmcnt(20)')
    p('s_barrier')
    p([rd(ar(KA_ + 4 * s), vPRV, s * 1024) for s in range(8)])
    p([rd(ar(KB_ + 4 * s), vPRV, (8 + s) * 1024) for s in range(8)])
    p('s_waitcnt lgkmcnt(8)')
    qk0 = [I(x.t) for x in qk_mfmas(0, None, None)]
    p(qk0[:16])
    p('s_waitcnt lgkmcnt(0)')
    p(qk0[16:])
    p('v_and_b32 v%d, 15, v%d' % (vT[0], vLANE))
    p('v_lshlrev_b32 v%d, 2, v%d' % (vT[0], vT[0]))
    p('s_lshl_b32 s%d, s%d, 7' % (sT0, sRB))
    p('s_add_u32 s%d, s%d, 0x%x' % (sT0, sT0, WS_G))
    p('s_waitcnt vmcnt(0)')
    p('s_barrier')
    for qt in range(2): p('buffer_load_dword v%d, v%d, s[%d:%d], s%d offen offset:%d' % (vG[qt], vT[0], SWS, SWS + 3, sT0, 64 * qt))
    p('s_lshl_b32 s%d, s%d, 4' % (sT0, sRB))
    p('s_add_u32 s%d, s%d, s%d' % (sT0, sT0, sH))
    p('s_lshl_b32 s%d, s%d, 13' % (sT0, sT0))
    p('s_add_u32 s%d, s%d, 0x%x' % (sT0, sT0, WS_H))
    for q4 in range(2):
        for i in range(4):
            p('buffer_load_dwordx4 %s, v%d, s[%d:%d], s%d offen offset:%d' % (ar(HF + 16 * q4 + 4 * i), vL16, SWS, SWS + 3, sT0, i * 1024))
        if q4 < 1: p('s_add_u32 s%d, s%d, 4096' % (sT0, sT0))
    p([rd(ar(KA_ + 4 * s), vPRV, 32768 + s * 1024) for s in range(8)])
    p('s_cmp_le_i32 s%d, 0' % sMK)
    p('s_cbranch_scc1 L_k2_maskp')
    p('L_k2_maskp_back:')
    p('s_mov_b32 s%d, %s' % (sCLAMP, hexf(-1e30)))
    p('s_mov_b32 s%d, 1' % sT3)
    p('s_branch L_k2_slow0')
    p('L_k2_pro_back:')
    p('s_mov_b32 s%d, 0' % sCLAMP)
    p('s_mov_b32 s%d, 0' % sT3)
    p('s_waitcnt lgkmcnt(0)')
    if STAMP: p(stamp_ops())
    ka0 = [rd(ar(KA_ + 4 * s), vCUR, s * 1024) for s in range(8)]
    ka1 = [rd(ar(KA_ + 4 * s), vCUR, 32768 + s * 1024) for s in range(8)]
    mfA0, stA0, mfB0, stB0 = half_iter(0, ka1, ka0)
    mfA1, stA1, mfB1, stB1 = half_iter(1, ka0, ka1)
    dB = Stream('dma', prio=3)
    for x in [I('s_add_u32 s%d, s%d, 65536' % (sKB, sKB)), GL('s_cmp_eq_u32 s%d, 1' % sCNT, 's_cselect_b32 s%d, 0x10000000, s%d' % (sT2, sKB))]:
        dB.add(x, e=4, d=8)
    for i, x in enumerate(lpiece(0) + lpiece(1)): dB.add(x, e=6 + int(2.5 * i), d=31)
    dA = Stream('dma', prio=3)
    for i, x in enumerate(lpiece(2)): dA.add(x, e=8 + 3 * i, d=26)
    dB1 = Stream('dma', prio=3)
    for i, x in enumerate(lpiece(3)): dB1.add(x, e=4 + 3 * i, d=20)
    ctl = Stream('ctl', prio=2)
    for x in [I('s_xor_b32 s%d, s%d, 0x10000' % (sM0L, sM0L)), I('s_sub_u32 s%d, s%d, 1' % (sCNT, sCNT))]: ctl.add(x, e=22, d=30)
    for x in [I('v_xor_b32 v%d, 0x10000, v%d' % (vPRV, vPRV)), I('v_xor_b32 v%d, 0x10000, v%d' % (vCUR, vCUR))]: ctl.add(x, e=30, d=31)
    body = []
    body += pack(mfA0, stA0, budget=8, last_reserve=True)
    body += [I('s_cbranch_vccnz L_k2_slow0'), I('L_k2_slow0_back:')]
    body += pack(mfB0, stB0 + [dB], budget=8, last_reserve=True)
    body += pack(mfA1, stA1 + [dA], budget=8, last_reserve=True)
    body += [I('s_cbranch_vccnz L_k2_slow1'), I('L_k2_slow1_back:')]
    body += pack(mfB1, stB1 + [dB1, ctl], budget=8, last_reserve=True)
    _, pend = insert_lgkm_waits(body, [])
    seq, pend2 = insert_lgkm_waits(body, pend)
    assert pend2 == pend[len(pend) - len(pend2):], (pend, pend2)
    p('L_k2_loop:')
    p(seq)
    p('s_cmp_lg_u32 s%d, 0' % sCNT)
    p('s_cbranch_scc1 L_k2_loop')
    p('s_waitcnt vmcnt(0) lgkmcnt(0)')
    p('s_barrier')
    if STAMP: p(stamp_ops())
    allreduce(p, 'v_add_f32', vL, [vT[0], vT[1]])
    p('s_cmp_eq_u32 s%d, 1' % sROLE)
    p('s_cbranch_scc1 L_k2_fin')
    p('s_cmp_eq_u32 s%d, 1' % sPHASE)
    p('s_cbranch_scc1 L_k2_fin')
    for qt in range(2): p('v_rcp_f32 v%d, v%d' % (vT[2 + qt], vL[qt]))
    for qt in range(2): p('v_cmp_lt_f32 s[%d:%d], 0, v%d' % (sMSK + 2 * qt, sMSK + 2 * qt + 1, vL[qt]))
    p('s_nop 1')
    for qt in range(2): p('v_cndmask_b32 v%d, 0, v%d, s[%d:%d]' % (vT[2 + qt], vT[2 + qt], sMSK + 2 * qt, sMSK + 2 * qt + 1))
    finalize_plain(p, [vT[2], vT[3]])
    p('s_mov_b32 s%d, s%d' % (sT0, sPM))
    for s in range(8):
        for qt in range(2):
            k = 2 * s + qt
            p('buffer_store_dwordx4 %s, v%d, s[%d:%d], s%d offen offset:%d sc1' % (vr(16 * s + 4 * qt), vL16, SWS, SWS + 3, sT0, (k % 4) * 1024))
            if k % 4 == 3: p('s_add_u32 s%d, s%d, 4096' % (sT0, sT0))
    st = vT[9]
    assert st % 2 == 0
    p('v_mov_b32 v%d, v%d' % (st, vM[0])); p('v_mov_b32 v%d, v%d' % (st + 1, vM[1]))
    p('v_mov_b32 v%d, v%d' % (st + 2, vL[0])); p('v_mov_b32 v%d, v%d' % (st + 3, vL[1]))
    p('buffer_store_dwordx4 %s, v%d, s[%d:%d], s%d offen sc1' % (vr(st), vL16, SWS, SWS + 3, sT0))
    p('s_waitcnt vmcnt(0)')
    p('s_barrier')
    p('s_cmp_eq_u32 s%d, 0' % sW)
    p('s_cbranch_scc0 L_k2_noflag')
    p('v_mov_b32 v%d, 1' % vT[0])
    p('buffer_store_dword v%d, off, s[%d:%d], s%d sc1' % (vT[0], SWS, SWS + 3, sFL))
    p('L_k2_noflag:')
    p('s_mov_b32 s%d, s%d' % (sB, sJ))
    p('s_mov_b32 s%d, 0' % sKB0)
    p('s_add_u32 s%d, s%d, 1' % (sN, sJ))
    p('s_lshl_b32 s%d, s%d, 2' % (sN, sN))
    p('s_mov_b32 s%d, 1' % sPHASE)
    p('s_branch L_k2_seg')
    p('L_k2_fin:')
    p('s_mul_i32 s%d, s%d, %d' % (sSOA, sH, 256 * 896))
    p('s_mul_i32 s%d, s%d, %d' % (sSOB, sH, 128 * 896))
    p('s_mov_b32 s%d, s%d' % (sM0A, sM0W))
    p('s_add_u32 s%d, s%d, 32768' % (sM0B, sM0))
    p('s_cmp_eq_u32 s%d, 1' % sROLE)
    p('s_cbranch_scc1 L_k2_merge')
    p(proj_dma())
    for qt in range(2): p('v_rcp_f32 v%d, v%d' % (vT[2 + qt], vL[qt]))
    p('s_nop 0')
    for qt in range(2): p('v_mul_f32 v%d, v%d, v%d' % (vT[2 + qt], vT[2 + qt], vG[qt]))
    finalize_plain(p, [vT[2], vT[3]])
    p('s_branch L_k2_proj')
    p('L_k2_merge:')
    p('s_mov_b32 s%d, 0x400000' % sT1)
    p('L_k2_poll:')
    p('buffer_load_dword v%d, off, s[%d:%d], s%d sc1' % (vT[0], SWS, SWS + 3, sFL))
    p('s_waitcnt vmcnt(0)')
    p('v_readfirstlane_b32 s%d, v%d' % (sT0, vT[0]))
    p('s_sub_u32 s%d, s%d, 1' % (sT1, sT1))
    p('s_cmp_eq_u32 s%d, 0' % sT1)
    p('s_cbranch_scc1 L_k2_polled')
    p('s_cmp_eq_u32 s%d, 1' % sT0)
    p('s_cbranch_scc1 L_k2_polled')
    p('s_sleep 8')
    p('s_branch L_k2_poll')
    p('L_k2_polled:')
    p('s_mov_b32 s%d, s%d' % (sT0, sPM))
    for s in range(8):
        for qt in range(2):
            k = 2 * s + qt
            p('buffer_load_dwordx4 %s, v%d, s[%d:%d], s%d offen offset:%d sc1' % (vr(128 + 4 * k), vL16, SWS, SWS + 3, sT0, (k % 4) * 1024))
            if k % 4 == 3: p('s_add_u32 s%d, s%d, 4096' % (sT0, sT0))
    p('buffer_load_dwordx4 %s, v%d, s[%d:%d], s%d offen sc1' % (vr(st), vL16, SWS, SWS + 3, sT0))
    p(proj_dma())
    p('s_waitcnt vmcnt(12)')
    mf_, w1, w2, lf = [vT[0], vT[1]], [vT[2], vT[3]], [vT[4], vT[5]], [vT[6], vT[7]]
    for qt in range(2):
        p('v_max_f32 v%d, v%d, v%d' % (mf_[qt], vM[qt], st + qt))
        p('v_sub_f32 v%d, v%d, v%d' % (w1[qt], vM[qt], mf_[qt]))
        p('v_sub_f32 v%d, v%d, v%d' % (w2[qt], st + qt, mf_[qt]))
    for qt in range(2):
        p('v_exp_f32 v%d, v%d' % (w1[qt], w1[qt])); p('v_exp_f32 v%d, v%d' % (w2[qt], w2[qt]))
    p('s_nop 0')
    for qt in range(2):
        p('v_mul_f32 v%d, v%d, v%d' % (w2[qt], w2[qt], st + 2 + qt))
        p('v_fma_f32 v%d, v%d, v%d, v%d' % (lf[qt], w1[qt], vL[qt], w2[qt]))
    for qt in range(2): p('v_rcp_f32 v%d, v%d' % (lf[qt], lf[qt]))
    p('s_nop 0')
    for qt in range(2):
        p('v_mul_f32 v%d, v%d, v%d' % (lf[qt], lf[qt], vG[qt]))
        p('v_mul_f32 v%d, v%d, v%d' % (w1[qt], w1[qt], lf[qt]))
        p('v_mul_f32 v%d, v%d, v%d' % (w2[qt], w2[qt], lf[qt]))
    for s in range(8):
        for qt in range(2):
            src = 128 + 4 * (2 * s + qt)
            a, b = Oacc(2 * s, qt), Oacc(2 * s + 1, qt)
            regs = [a, a + 1, a + 2, a + 3, b, b + 1, b + 2, b + 3]
            for k in range(4):
                lo, hi = regs[2 * k], regs[2 * k + 1]
                p('v_lshlrev_b32 v%d, 16, v%d' % (vT[8], src + k))
                p('v_and_b32 v%d, 0xffff0000, v%d' % (vT[13], src + k))
                p('v_mul_f32 v%d, v%d, v%d' % (lo, lo, w1[qt]))
                p('v_mul_f32 v%d, v%d, v%d' % (hi, hi, w1[qt]))
                p('v_fmac_f32 v%d, v%d, v%d' % (lo, vT[8], w2[qt]))
                p('v_fmac_f32 v%d, v%d, v%d' % (hi, vT[13], w2[qt]))
            p('v_cvt_pk_bf16_f32 v%d, v%d, v%d' % (a, a, a + 1))
            p('v_cvt_pk_bf16_f32 v%d, v%d, v%d' % (a + 1, a + 2, a + 3))
            p('v_cvt_pk_bf16_f32 v%d, v%d, v%d' % (a + 2, b, b + 1))
            p('v_cvt_pk_bf16_f32 v%d, v%d, v%d' % (a + 3, b + 2, b + 3))
    p('L_k2_proj:')
    p('s_mul_i32 s%d, s%d, %d' % (sPO, sRB, 28 * 16384))
    p('s_lshl_b32 s%d, s%d, 10' % (sT0, sH))
    p('s_add_u32 s%d, s%d, s%d' % (sPO, sPO, sT0))
    p('s_add_u32 s%d, s%d, 0x%x' % (sPO, sPO, WS_PO))
    p('s_mov_b32 s%d, 0x10000000' % sOUT)
    p('s_movk_i32 s%d, 7' % sCNT)
    p('s_waitcnt vmcnt(0)')
    p('s_barrier')
    if STAMP: p(stamp_ops())
    eng = Eng()
    pre = []
    for ps in range(PRE):
        r = eng.reads(0, ps, ps); pre.append([x.tag for x in r]); p(r)
    flat = [t for g_ in pre for t in g_]
    p('L_k2_ploop:')
    cout = proj_epilogue()
    cin = Stream('carry', prio=3)
    for (e, x) in cout: cin.add(x, e=e, d=60)
    d = [I('s_add_u32 s%d, s%d, 128' % (sSOA, sSOA)), I('s_add_u32 s%d, s%d, 128' % (sSOB, sSOB)),
         GL('s_cmp_eq_u32 s%d, 1' % sCNT, 's_cselect_b32 s%d, 0x10000000, s%d' % (sSOA, sSOA), 's_cselect_b32 s%d, 0x10000000, s%d' % (sSOB, sSOB)),
         I('s_xor_b32 s%d, s%d, 0x10000' % (sM0A, sM0A)), I('s_xor_b32 s%d, s%d, 0x10000' % (sM0B, sM0B))]
    ds_ = Stream('dma', prio=3)
    for i, x in enumerate(d): ds_.add(x, e=i, d=8)
    for i, x in enumerate(proj_dma()): ds_.add(x, e=6 + 3 * i, d=60)
    so = Stream('sout', prio=4)
    so.add(I('s_mov_b32 s%d, s%d' % (sOUT, sPO)), e=64, d=80)
    so.add(I('s_add_u32 s%d, s%d, 65536' % (sPO, sPO)), e=64, d=80)
    seq, nxt, pend = proj_segment(eng, 0, pre, [ds_, cin, so], flat)
    p(seq)
    for v in range(4):
        p('v_xor_b32 v%d, 0x10000, v%d' % (vVA[v], vVA[v])); p('v_xor_b32 v%d, 0x10000, v%d' % (vVB[v], vVB[v]))
    p('s_sub_u32 s%d, s%d, 1' % (sCNT, sCNT))
    p('s_cmp_lg_u32 s%d, 0' % sCNT)
    p('s_cbranch_scc1 L_k2_ploop')
    p('s_nop 7')
    p([x for (_, x) in cout])
    if STAMP:
        p('s_waitcnt vmcnt(0) lgkmcnt(0)')
        p(stamp_ops()); p('s_waitcnt lgkmcnt(0)'); p(stamp_ops())
        p('s_memrealtime s[92:93]'); p('s_waitcnt lgkmcnt(0)'); p(stamp_ops()[:3])
    p('s_endpgm')
    p('L_k2_pf:')
    p('s_mul_i32 s%d, s%d, %d' % (sT0, sH, 256 * 896))
    p('s_mul_i32 s%d, s%d, %d' % (sT1, sH, 128 * 896))
    p('buffer_load_dword v%d, v%d, s[%d:%d], s%d offen' % (vDUM, vPFO, SWO, SWO + 3, sT0))
    p('buffer_load_dword v%d, v%d, s[%d:%d], s%d offen' % (vDUM, vPFD, SWD, SWD + 3, sT1))
    p('s_branch L_k2_pf_back')
    mask_block(p, 0, 'L_k2_maskp', 'L_k2_maskp_back')
    mask_block(p, 0, 'L_k2_mask0', 'L_k2_mask0_back')
    mask_block(p, 1, 'L_k2_mask1', 'L_k2_mask1_back')
    slow_path(p, 0, 'L_k2_slow0')
    slow_path(p, 1, 'L_k2_slow1')
    p('L_k2_end:')
    p('s_endpgm')
    return p
```

```python
from fw import *
from common import *
NAME = 'k3_reduce_kernel'
GRID = 64 * 28 // 4
VGPR = 80
STAMP = False
WS_DBG = 0x0c000000 + (2 << 20)
def build():
    p = Prog()
    p('%s:' % NAME)
    p('s_cmp_ge_u32 s2, %d' % GRID)
    p('s_cbranch_scc1 L_k3_end')
    p('s_load_dwordx2 s[4:5], s[0:1], %d' % KA['ws'])
    p('s_load_dwordx2 s[6:7], s[0:1], %d' % KA['out'])
    p('v_lshrrev_b32 v1, 6, v0')
    p('v_and_b32 v2, 63, v0')
    p('v_readfirstlane_b32 s3, v1')
    p('s_lshl_b32 s16, s2, 2')
    p('s_add_u32 s16, s16, s3')
    p('v_lshlrev_b32 v3, 4, v2')
    p('s_lshl_b32 s17, s16, 14')
    p('s_add_u32 s17, s17, 0x%x' % WS_PO)
    p('s_waitcnt lgkmcnt(0)')
    p('s_mov_b32 s8, s4'); p('s_and_b32 s9, s5, 0xffff'); p('s_mov_b32 s10, 0x%x' % SZ['ws']); p('s_mov_b32 s11, 0x20000')
    p('s_mov_b32 s12, s6'); p('s_and_b32 s13, s7, 0xffff'); p('s_mov_b32 s14, 0x%x' % SZ['out']); p('s_mov_b32 s15, 0x20000')
    if STAMP:
        p('s_memrealtime s[24:25]')
        p('s_lshl_b32 s26, s16, 4')
        p('s_add_u32 s26, s26, 0x%x' % WS_DBG)
        p('s_waitcnt lgkmcnt(0)')
    for h in range(16):
        p('buffer_load_dwordx4 v[%d:%d], v3, s[8:11], s17 offen offset:%d' % (16 + 4 * h, 19 + 4 * h, (h % 4) * 1024))
        if h % 4 == 3 and h < 15: p('s_add_u32 s17, s17, 4096')
    p('s_mul_i32 s18, s16, 2341')
    p('s_lshr_b32 s18, s18, 16')
    p('s_mul_i32 s19, s18, 28')
    p('s_sub_u32 s19, s16, s19')
    p('s_and_b32 s20, s19, 1')
    p('s_lshr_b32 s21, s19, 1')
    p('s_lshl_b32 s22, s18, 5')
    p('s_lshl_b32 s20, s20, 4')
    p('s_add_u32 s22, s22, s20')
    p('s_mul_i32 s22, s22, 896')
    p('s_lshl_b32 s21, s21, 6')
    p('s_add_u32 s22, s22, s21')
    p('v_and_b32 v4, 15, v2')
    p('v_mul_u32_u24 v4, 896, v4')
    p('v_lshrrev_b32 v5, 4, v2')
    p('v_lshl_add_u32 v4, v5, 3, v4')
    for h in range(16):
        p('s_waitcnt vmcnt(%d)' % (15 - h))
        for k in range(4):
            src = 16 + 4 * h + k
            if h == 0:
                p('v_lshlrev_b32 v%d, 16, v%d' % (8 + 2 * k, src))
                p('v_and_b32 v%d, 0xffff0000, v%d' % (9 + 2 * k, src))
            else:
                p('v_lshlrev_b32 v6, 16, v%d' % src)
                p('v_and_b32 v7, 0xffff0000, v%d' % src)
                p('v_add_f32 v%d, v%d, v6' % (8 + 2 * k, 8 + 2 * k))
                p('v_add_f32 v%d, v%d, v7' % (9 + 2 * k, 9 + 2 * k))
    for k in range(4): p('v_cvt_pk_bf16_f32 v%d, v%d, v%d' % (16 + k, 8 + 2 * k, 9 + 2 * k))
    p('buffer_store_dwordx2 v[16:17], v4, s[12:15], s22 offen')
    p('buffer_store_dwordx2 v[18:19], v4, s[12:15], s22 offen offset:32')
    if STAMP:
        p('s_waitcnt vmcnt(0)')
        p('s_memrealtime s[28:29]')
        p('s_waitcnt lgkmcnt(0)')
        p('v_mov_b32 v20, s24')
        p('v_mov_b32 v21, s28')
        p('buffer_store_dwordx2 v[20:21], off, s[8:11], s26')
    p('L_k3_end:')
    p('s_endpgm')
    return p
```

```python
import sys, importlib
from fw import *
HEAD = open('gated_mix__compressed_kv_cla__geglu_ffn__prompt.s.ref').read().split('; Override launch')[0]

def desc(name, vgpr, accum, sgpr=102):
    return """.amdhsa_kernel %s
  .amdhsa_next_free_vgpr %d
  .amdhsa_next_free_sgpr %d
  .amdhsa_accum_offset %d
  .amdhsa_group_segment_fixed_size 0
  .amdhsa_kernarg_size 112
  .amdhsa_user_sgpr_count 2
  .amdhsa_user_sgpr_kernarg_segment_ptr 1
  .amdhsa_system_sgpr_workgroup_id_x 1
.end_amdhsa_kernel
""" % (name, vgpr, sgpr, accum)

def make(kernels, path):
    out = HEAD
    for (name, p, grid, block, lds, vgpr, accum) in kernels:
        out += '; @launch kernel=%s grid=(%d,1,1) block=(%d,1,1) lds=%d\n' % (name, grid, block, lds)
    out += '.amdgcn_target "amdgcn-amd-amdhsa--gfx950"\n.text\n'
    nerr = 0
    for (name, p, *_r) in kernels:
        p.seq = fix_m0(p.seq)
        errs = lint(p.seq, name)
        for e in errs[:20]: print(e)
        nerr += len(errs)
        out += '.globl %s\n.p2align 8\n.type %s,@function\n' % (name, name)
        out += p.text()
    out += '.section .rodata,"a"\n'
    for (name, p, grid, block, lds, vgpr, accum) in kernels:
        out += '.p2align 6\n' + desc(name, vgpr, accum)
    open(path, 'w').write(out)
    print('%s: %d bytes, %d instructions, %d lint errors' % (path, len(out), sum(len(k[1].seq) for k in kernels), nerr))
    return nerr

if __name__ == '__main__':
    which = sys.argv[1].split(',')
    path = sys.argv[2]
    ks = []
    import os
    opts = dict(kv.split('=') for kv in os.environ.get('OPTS', '').split(',') if kv)
    stamp = len(sys.argv) > 3 and sys.argv[3] == 'stamp'
    if 'k1' in which:
        import k1
        k1.STAMP = stamp
        k1.ST_FLAGS = opts.get('st1', '').replace('_', ' ')
        k1.MAPB = opts.get('mapb', '0') == '1'
        if len(sys.argv) > 4: k1.ABL = set(sys.argv[4].split(','))
        ks.append((k1.NAME, k1.build(), 256, 256, 163840, 512, 256))
    if 'k2' in which:
        import k2
        k2.STAMP = stamp
        k2.ST_FLAGS = opts.get('st2', '').replace('_', ' ')
        ks.append((k2.NAME, k2.build(), 256, 256, 163840, 512, 256))
    if 'k3' in which:
        import k3
        k3.STAMP = stamp
        ks.append((k3.NAME, k3.build(), k3.GRID, 256, 0, k3.VGPR, k3.VGPR))
    make(ks, path)
```

```python
import re

COST = {'mfma': 8, 'valu': 4, 'trans': 8, 'salu': 4, 'ds': 4, 'vmem': 4, 'wait': 4, 'bar': 4, 'nop': 4, 'br': 4, 'label': 0}

def kind_of(text):
    m = text.split()[0]
    if text.endswith(':'): return 'label'
    if m.startswith('v_mfma'): return 'mfma'
    if m in ('v_exp_f32', 'v_rcp_f32', 'v_log_f32', 'v_rsq_f32', 'v_sqrt_f32'): return 'trans'
    if m.startswith('v_'): return 'valu'
    if m.startswith('ds_'): return 'ds'
    if m.startswith('buffer_') or m.startswith('global_'): return 'vmem'
    if m == 's_waitcnt': return 'wait'
    if m == 's_barrier': return 'bar'
    if m == 's_nop': return 'nop'
    if m.startswith('s_cbranch') or m in ('s_branch', 's_endpgm', 's_setpc_b64', 's_swappc_b64'): return 'br'
    return 'salu'

class I:
    __slots__ = ('t', 'k', 'tag', 'need', 'cost', 'vneed')
    def __init__(self, t, tag=None, need=(), cost=None, vneed=()):
        self.t = t.strip(); self.k = kind_of(self.t); self.tag = tag; self.need = tuple(need); self.vneed = tuple(vneed)
        if cost is None:
            cost = COST[self.k]
            if self.k == 'nop': cost = 4 * (int(self.t.split()[1]) + 1)
        self.cost = cost

class GL(I):
    __slots__ = ('members',)
    def __init__(self, *texts):
        self.members = [x if isinstance(x, I) else I(x) for x in texts]
        I.__init__(self, self.members[0].t)
        self.cost = sum(m.cost for m in self.members if m.k != 'label')

class Stream:
    def __init__(self, name, prio=0, elastic=False, pace=0):
        self.name = name; self.items = []; self.prio = prio; self.elastic = elastic; self.pace = pace
    def add(self, ins, e=0, d=10 ** 9):
        if isinstance(ins, str): ins = I(ins)
        self.items.append((e, d, ins)); return ins

SCALAR = ('salu', 'wait', 'bar', 'br', 'nop', 'label')
def cls_of(ins):
    if ins.k in SCALAR: return 0
    if ins.k in ('ds', 'vmem'): return 1
    return 2

def pack(mfmas, streams, budget=8, last_reserve=False, vm_gap=0.0):
    out = []
    pos = [0] * len(streams)
    n = len(mfmas)
    vm_next = [-10.0]
    def eff_deadline(si):
        st = streams[si]; p = pos[si]
        return min(d for (_, d, _) in st.items[p:p + 96])
    def fill(g, bud, free_scalar):
        used = 0; level = 0
        paced = {}
        nb128 = [0]
        def heads():
            for si, st in enumerate(streams):
                if pos[si] >= len(st.items): continue
                e, d, ins = st.items[pos[si]]
                if e <= g: yield si, st, e, d, ins
        while True:
            hs = list(heads())
            trans_wait = any(ins.k == 'trans' for (_, _, _, _, ins) in hs)
            forced_vec = any(eff_deadline(si) <= g and cls_of(ins) > 0 for (si, _, _, _, ins) in hs)
            best = None
            for (si, st, e, d, ins) in hs:
                dl = eff_deadline(si)
                forced = dl <= g
                c = cls_of(ins)
                cost = ins.cost - 4 if (c == 0 and free_scalar and ins.k != 'label') else (0 if ins.k == 'label' else ins.cost)
                if isinstance(ins, GL): cost = min(cost, 4)
                if not forced:
                    if used + cost > bud: continue
                    if c < level: continue
                    if st.pace and paced.get(si, 0) >= (2 if trans_wait else st.pace): continue
                    if 'b128' in ins.t and ins.k == 'ds' and nb128[0] >= 1: continue
                    if vm_gap and ins.k == 'vmem' and g < vm_next[0] - 0.5: continue
                key = (0, c, dl, -st.prio, si) if forced else (1, c, dl, -st.prio, si)
                if not forced and st.pace and paced.get(si, 0) >= st.pace: key = (1, c, 10 ** 8, -st.prio, si)
                if c == 0 and level == 0 and (cost == 0 or forced or (free_scalar and isinstance(ins, GL))): key = (-1, 0, dl, -st.prio, si)
                if ins.k == 'trans' and not forced and used == 0 and not forced_vec: key = (1, 0.5, dl, -st.prio, si)
                if best is None or key < best[0]: best = (key, si, cost, c)
            if best is None: break
            _, si, cost, c = best
            ins = streams[si].items[pos[si]][2]
            if isinstance(ins, GL): out.extend(ins.members)
            else: out.append(ins)
            used += cost; pos[si] += 1
            paced[si] = paced.get(si, 0) + 1
            if 'b128' in ins.t and ins.k == 'ds': nb128[0] += 1
            if ins.k == 'vmem': vm_next[0] = max(vm_next[0], g - 0.5) + vm_gap
            if c == 0 and ins.k != 'label': free_scalar = False
            level = max(level, c)
        return used
    fill(-1, 0, False)
    for g, m in enumerate(mfmas):
        out.append(m)
        nxt = mfmas[g + 1] if g + 1 < len(mfmas) else None
        wants_wait = (nxt is not None and (nxt.need or nxt.vneed)) or (nxt is None and last_reserve)
        fill(g, budget, not wants_wait)
    for si, st in enumerate(streams):
        if st.elastic:
            st.items = [(-1, d - n if d < 10 ** 8 else d, ins) for (_, d, ins) in st.items[pos[si]:]]
        else:
            while pos[si] < len(st.items):
                x = st.items[pos[si]][2]
                if isinstance(x, GL): out.extend(x.members)
                else: out.append(x)
                pos[si] += 1
            st.items = []
    return out

def insert_lgkm_waits(seq, pending=()):
    seq = list(seq)
    early = {}
    prev = None
    issued_at = {}
    for i, ins in enumerate(seq):
        if ins.k == 'ds' and ins.tag is not None: issued_at[ins.tag] = i
        if ins.k == 'mfma':
            if ins.need and prev is not None:
                between = seq[prev + 1:i]
                ok = all(issued_at.get(t, -1) < prev for t in ins.need) and not any(x.k in ('label', 'br', 'bar') or (x.k == 'wait') for x in between)
                if ok: early[prev] = ins.need
            prev = i
    q = list(pending)
    out = []
    def wait_for(need):
        nonlocal q
        idx = -1
        for t in need:
            if t in q: idx = max(idx, len(q) - 1 - q[::-1].index(t))
        if idx >= 0:
            n = min(len(q) - 1 - idx, 15)
            out.append(I('s_waitcnt lgkmcnt(%d)' % n))
            q = q[len(q) - n:] if n else []
    for i, ins in enumerate(seq):
        if ins.need: wait_for(ins.need)
        if ins.k == 'wait':
            m = re.search(r'lgkmcnt\((\d+)\)', ins.t)
            if m:
                n = int(m.group(1))
                q = q[len(q) - n:] if n and len(q) > n else (q if n and len(q) <= n else [])
        if ins.k == 'ds':
            q.append(ins.tag if ins.tag is not None else ('anon', id(ins)))
        out.append(ins)
        if i in early: wait_for(early[i])
    return out, q

_reg = re.compile(r'\b([vas])\[(\d+):(\d+)\]|\b([vas])(\d+)\b')
def regs_of(op):
    r = set()
    for m in _reg.finditer(op):
        if m.group(1):
            for i in range(int(m.group(2)), int(m.group(3)) + 1): r.add((m.group(1), i))
        else:
            r.add((m.group(4), int(m.group(5))))
    if re.search(r'\bvcc\b', op): r.add(('s', 'vcc'))
    if re.search(r'\bm0\b', op): r.add(('s', 'm0'))
    if re.search(r'\bexec\b', op): r.add(('s', 'exec'))
    return r

def split_ops(text):
    parts = text.split(None, 1)
    if len(parts) == 1: return parts[0], []
    ops = [o.strip() for o in parts[1].split(',')]
    return parts[0], ops

def rw(ins):
    m, ops = split_ops(ins.t)
    k = ins.k
    w, r, c = set(), set(), set()
    if k == 'mfma':
        w = regs_of(ops[0]); r = regs_of(ops[1]) | regs_of(ops[2]); c = regs_of(ops[3])
    elif k in ('valu', 'trans'):
        if m.startswith('v_cmp'):
            w = regs_of(ops[0]); r = set().union(*[regs_of(o) for o in ops[1:]])
        elif (m.startswith('v_permlane') and 'swap' in m) or m.startswith('v_swap'):
            w = regs_of(ops[0]) | regs_of(ops[1]); r = set(w)
        else:
            w = regs_of(ops[0]); r = set().union(*[regs_of(o) for o in ops[1:]]) if len(ops) > 1 else set()
            if m.startswith('v_fmac') or m.startswith('v_pk_fmac') or m.startswith('v_dot2c'): r |= w
            if m.startswith('v_cndmask') and len(ops) == 3: r.add(('s', 'vcc'))
            if m.startswith('v_add_co') or m.startswith('v_addc_co'):
                w |= regs_of(ops[1])
    elif k == 'ds':
        if 'read' in m or 'permute' in m or 'swizzle' in m:
            w = regs_of(ops[0]); r = set().union(*[regs_of(o.split()[0]) for o in ops[1:]])
        else:
            r = set().union(*[regs_of(o.split()[0]) for o in ops])
    elif k == 'vmem':
        if ' lds' in ins.t:
            r = set().union(*[regs_of(o.split()[0]) for o in ops]); r.add(('s', 'm0'))
        elif 'load' in m:
            w = regs_of(ops[0]); r = set().union(*[regs_of(o.split()[0]) for o in ops[1:]])
        else:
            r = set().union(*[regs_of(o.split()[0]) for o in ops])
    elif k == 'salu':
        if m.startswith('s_cmp'):
            r = set().union(*[regs_of(o) for o in ops])
        elif ops:
            w = regs_of(ops[0]); r = set().union(*[regs_of(o) for o in ops[1:]]) if len(ops) > 1 else set()
    return w, r, c

def states(ins):
    if ins.k == 'label': return 0
    if ins.k == 'nop': return int(ins.t.split()[1]) + 1
    return 1

SCC_W = ('s_add_', 's_sub_', 's_addc', 's_subb', 's_and_', 's_or_', 's_xor_', 's_lshl', 's_lshr', 's_ashr', 's_min', 's_max', 's_cmp', 's_not', 's_bfe', 's_andn2', 's_addk', 's_cmpk')
def lint_scc(seq, name):
    errs = []
    for i, ins in enumerate(seq):
        m = ins.t.split()[0]
        if m.startswith('s_cbranch_scc') or m.startswith('s_cselect') or m.startswith('s_addc') or m.startswith('s_subb'):
            for j in range(i - 1, -1, -1):
                w = seq[j].t.split()[0]
                if seq[j].k == 'label' and not seq[j].t.endswith('_back:'):
                    errs.append('%s: SCC read crosses label %s: %s' % (name, seq[j].t, ins.t)); break
                if any(w.startswith(x) for x in SCC_W):
                    good = w.startswith('s_cmp') if not (m.startswith('s_addc') or m.startswith('s_subb')) else (w.startswith('s_add_u32') or w.startswith('s_sub_u32'))
                    if not good: errs.append('%s: SCC for "%s" comes from "%s"' % (name, ins.t, seq[j].t))
                    break
    return errs

def lint(seq, name=''):
    errs = lint_scc(seq, name)
    info = [rw(i) for i in seq]
    n = len(seq)
    for a in range(n):
        A = seq[a]; wa, ra, ca = info[a]
        if A.k == 'label': continue
        dist = 0
        for b in range(a + 1, min(n, a + 40)):
            B = seq[b]; wb, rb, cb = info[b]
            if B.k == 'label': continue
            need = 0; why = ''
            mA = A.t.split()[0]; mB = B.t.split()[0]
            passesA = 4 if '16x16x32' in mA else 8
            vw = {x for x in wa if x[0] in 'va'}
            sw = {x for x in wa if x[0] == 's'}
            if A.k in ('valu', 'trans'):
                if B.k == 'mfma' and vw & (rb | cb): need, why = 2, 'VALU->MFMA operand'
                if mB.startswith('v_permlane') and vw & rb: need, why = max(need, 2), 'VALU->permlane'
                if mB.startswith('v_readfirstlane') or mB.startswith('v_readlane'):
                    if vw & rb: need, why = max(need, 1), 'VALU->readlane'
                if B.k in ('valu', 'trans') and 'dpp' in B.t or (B.k in ('valu', 'trans') and ('row_' in B.t or 'quad_perm' in B.t)):
                    if vw & rb: need, why = max(need, 2), 'VALU->DPP'
                if sw & rb:
                    if B.k == 'vmem': need, why = max(need, 5), 'VALU sgpr->VMEM'
                    elif B.k in ('valu', 'trans'): need, why = max(need, 2), 'VALU sgpr->VALU'
                if A.k == 'trans' and B.k == 'valu' and vw & rb: need, why = max(need, 1), 'trans->VALU'
                if A.k == 'trans' and B.k == 'trans' and vw & rb: need, why = max(need, 1), 'trans->trans'
            if A.k == 'mfma':
                if B.k == 'mfma':
                    if wa & rb: need, why = passesA + 4, 'MFMA D->MFMA A/B'
                    elif wa & cb and not (wa == cb and mA == mB): need, why = passesA + 2, 'MFMA D->overlapping C'
                    elif wa & wb and not (wa == wb and wa == cb) and not (wa == wb): need, why = passesA + 2, 'MFMA WAW partial'
                elif B.k in ('valu', 'trans'):
                    if wa & (rb | wb): need, why = passesA + 4, 'MFMA D->VALU'
                    elif ca & wb: need, why = passesA - 1, 'MFMA C WAR VALU'
                elif B.k in ('ds', 'vmem'):
                    if wa & (rb | wb): need, why = passesA + 4, 'MFMA D->mem'
            if A.k == 'vmem' and ('store' in mA) and ('x4' in mA or 'x3' in mA):
                data = regs_of(split_ops(A.t)[1][0])
                if data & wb and B.k in ('valu', 'trans'): need, why = max(need, 2), 'store data WAR'
                elif data & wb and B.k != 'mfma': need, why = max(need, 1), 'store data WAR'
            if A.k == 'salu' and ('s', 'm0') in wa and B.k == 'vmem' and ' lds' in B.t: need, why = max(need, 1), 'M0->LDS DMA'
            if need > dist:
                errs.append('%s: %s needs %d has %d\n    %s\n    %s' % (name, why, need, dist, A.t, B.t))
            dist += states(B)
            if dist >= 20: break
    return errs

class Prog:
    def __init__(self):
        self.seq = []
    def __call__(self, s, **kw):
        if isinstance(s, GL): self.seq.extend(s.members); return s
        if isinstance(s, I): self.seq.append(s); return s
        if isinstance(s, (list, tuple)):
            for x in s: self(x)
            return
        last = None
        for l in s.strip('\n').split('\n'):
            l = l.split(';')[0].strip()
            if l:
                last = I(l, **kw); self.seq.append(last)
        return last
    def text(self):
        return ''.join((i.t if i.k == 'label' else '  ' + i.t) + '\n' for i in self.seq)


def fix_m0(seq):
    out = list(seq)
    i = 0
    while i < len(out) - 1:
        a, b = out[i], out[i + 1]
        if a.k == 'salu' and a.t.split()[1].startswith('m0') and b.k == 'vmem' and ' lds' in b.t:
            prev = out[i - 1] if i else None
            srcs = regs_of(a.t.split(None, 1)[1].split(',', 1)[1])
            ok = prev is not None and prev.k in ('mfma', 'valu', 'trans', 'ds', 'salu') and not (rw(prev)[0] & srcs) \
                and not (prev.k == 'salu' and (prev.t.startswith('s_cmp') or prev.t.startswith('s_cselect') or ('s', 'm0') in rw(prev)[0]))
            if ok:
                out[i - 1], out[i] = a, prev
            else:
                out.insert(i + 1, I('s_nop 0')); i += 1
        i += 1
    return out


def insert_vm_waits(seq, issued):
    out = []
    for ins in seq:
        if ins.vneed:
            idx = max((i for i, t in enumerate(issued) if t in ins.vneed), default=-1)
            missing = [t for t in ins.vneed if t not in issued]
            assert not missing, missing
            n = min(len(issued) - 1 - idx, 63)
            if ins.k == 'wait':
                ins = I('s_waitcnt vmcnt(%d) %s' % (n, ins.t.split(None, 1)[1] if len(ins.t.split()) > 1 else ''), tag=ins.tag, need=ins.need)
            else:
                out.append(I('s_waitcnt vmcnt(%d)' % n))
        if ins.k == 'vmem': issued.append(ins.tag if ins.tag is not None else ('anon', id(ins)))
        out.append(ins)
    return out
```

```python
from fw import *
from common import *

NAME = 'k1_proj_kernel'
sW, sH, sB, sRB = 4, 5, 6, 7
SX, SC, SWQ, SWG, SWU, SWK, SWV, SWS, SGW = 8, 12, 16, 20, 24, 28, 32, 36, 40
sM0W, sM0W16, sSOFF, sXB, sCB = 44, 45, 46, 47, 48
sT0, sT1, sT2 = 49, 50, 51
sQSC = 52
sQO, sHO, sKO, sOUT = 53, 54, 55, 56
sCOL, sCOLF = 57, 58
sCNT, sCK, sGRP, sC1 = 59, 60, 61, 62
sHOUT, sNXO = 63, 3
SNX = 96
sKPTR = 64
vLANE, vL16, vL16B = 0, 1, 2
vT = list(range(3, 12))
vVA = [12, 13, 14, 15]
vVB = [16, 17, 18, 19]
vDOFF = list(range(20, 36))
vSOFF = [36, 37, 38, 39]
vRD = [40, 41]
vIO = [42, 43]
vPAT = [44, 45]
vC2, vDUM = 46, 47
XR = 48
ACCG, ACCU, TMP = 160, 192, 224
RING_A = 224
vPFQ, vPFF, vPFK = 34, 35, 11
ACCX = 128
sPFO, sGI = 100, 101
SPF = 64
RING_V, ACCKV, TMPKV = 48, 80, 112
PRE = 3
STAMP = False
MAPB = False
USE_PF = True
END_PF = 'mid'
VM_GAP = 3.8
C_READ_AT = 0.30
ST_FLAGS = ''
ABL = set()
WS_DBG = 0x0c000000

def stamp_ops():
    return [I('v_mov_b32 v%d, s92' % vDUM), I('buffer_store_dword v%d, off, s[%d:%d], s94' % (vDUM, SWS, SWS + 3)), I('s_add_u32 s94, s94, 4'), I('s_memtime s[92:93]')]

def vr(b, n=4): return 'v[%d:%d]' % (b, b + n - 1)
def ar(b, n=4): return 'a[%d:%d]' % (b, b + n - 1)
def xfrag(s, t): return vr(XR + 8 * s + 4 * t) if s < 10 else ar(192 + 8 * (s - 10) + 4 * t)
def cfrag(s, t): return ar(8 * s + 4 * t)
def acc(base, u, t): return base + 8 * u + 4 * t
def mfma(d, a, b, c): return 'v_mfma_f32_16x16x32_bf16 %s, %s, %s, %s' % (d, a, b, c)

def srd(p, base, ptr, size):
    p('s_mov_b32 s%d, s%d' % (base, ptr))
    p('s_and_b32 s%d, s%d, 0xffff' % (base + 1, ptr + 1))
    p('s_mov_b32 s%d, 0x%x' % (base + 2, size))
    p('s_mov_b32 s%d, 0x20000' % (base + 3))

class Eng:
    def __init__(self): self.sigma = 0; self.uid = 0
    def ring(self, sg, in_agpr, half):
        b = (RING_A if in_agpr else RING_V) + 8 * (sg % 4) + 4 * half
        return ('a' if in_agpr else 'v'), b
    def reads(self, st, slot, sg):
        kp, u = divmod(slot, st['nu'])
        va = vVA if st['buf'] == 0 else vVB
        res = []
        for hf in range(2):
            s = 2 * kp + hf
            cls, b = self.ring(sg, st['ring_a'], hf)
            for j in range(2):
                addr = va[u] if j == 0 else va[u ^ 2]
                self.uid += 1
                res.append(I('ds_read_b64_tr_b16 %s[%d:%d], v%d offset:%d' % (cls, b + 2 * j, b + 2 * j + 1, addr, s * 4096 + 512 * j), tag=('w', self.uid)))
        return res

def nslots(st): return (st['nk'] // 2) * st['nu']

def dma_w(st, first=0, last=None):
    res = []
    nk = st['nk']; m0 = sM0W if nk == 14 else sM0W16
    last = nk if last is None else last
    for x in st['soff']: res.append(x if isinstance(x, I) else I(x))
    for i in range(first, last):
        if i % 4 == 0 or i == first:
            res.append(I('s_add_u32 m0, s%d, %d' % (m0, st['buf'] * 65536 + (i // 4) * 4096)))
        res.append(I('buffer_load_dwordx4 v%d, s[%d:%d], s%d offen offset:%d lds' % (vDOFF[i], st['srd'], st['srd'] + 3, sSOFF, (i % 4) * 1024), tag=('wd', next_id())))
    return res

_ids = [0]
def next_id():
    _ids[0] += 1
    return _ids[0]

def pf(voff, srd_, soff):
    return I('buffer_load_dword v%d, v%d, s[%d:%d], s%d offen' % (vDUM, voff, srd_, srd_ + 3, soff))

def doff_setup(nk, rs):
    res = []
    a = res.append
    a(I('v_lshrrev_b32 v%d, 3, v%d' % (vT[0], vLANE)))
    a(I('s_mul_i32 s%d, s%d, %d' % (sT0, sW, 8 * nk * rs)))
    a(I('v_mul_u32_u24 v%d, %d, v%d' % (vT[1], rs, vT[0])))
    a(I('v_add_u32 v%d, s%d, v%d' % (vT[1], sT0, vT[1])))
    a(I('v_bfe_u32 v%d, v%d, 4, 2' % (vT[2], vLANE)))
    a(I('v_bfe_u32 v%d, v%d, 1, 2' % (vT[3], vLANE)))
    a(I('v_xor_b32 v%d, v%d, v%d' % (vT[2], vT[2], vT[3])))
    a(I('v_and_b32 v%d, 1, v%d' % (vT[3], vLANE)))
    a(I('v_lshlrev_b32 v%d, 4, v%d' % (vT[3], vT[3])))
    a(I('v_add_u32 v%d, v%d, v%d' % (vT[1], vT[1], vT[3])))
    a(I('v_lshl_add_u32 v%d, v%d, 5, v%d' % (vPAT[0], vT[2], vT[1])))
    a(I('v_xor_b32 v%d, 2, v%d' % (vT[2], vT[2])))
    a(I('v_lshl_add_u32 v%d, v%d, 5, v%d' % (vPAT[1], vT[2], vT[1])))
    for i in range(nk):
        a(I('v_add_u32 v%d, 0x%x, v%d' % (vDOFF[i], 8 * i * rs - (i % 4) * 1024, vPAT[i % 2])))
    return res

def staging_offsets(rs):
    res = []
    a = res.append
    a(I('v_lshrrev_b32 v%d, 3, v%d' % (vT[0], vLANE)))
    a(I('s_lshl_b32 s%d, s%d, 5' % (sT0, sRB)))
    a(I('v_add_u32 v%d, s%d, v%d' % (vT[1], sT0, vT[0])))
    a(I('s_mov_b32 s%d, %d' % (sT1, rs)))
    a(I('v_mul_lo_u32 v%d, s%d, v%d' % (vT[1], sT1, vT[1])))
    a(I('v_lshrrev_b32 v%d, 4, v%d' % (vT[2], vLANE)))
    a(I('v_and_b32 v%d, 7, v%d' % (vT[3], vLANE)))
    a(I('v_xor_b32 v%d, v%d, v%d' % (vT[2], vT[2], vT[3])))
    for i in range(4):
        t = vT[4]
        if i % 2:
            a(I('v_xor_b32 v%d, 4, v%d' % (t, vT[2])))
            a(I('v_lshl_add_u32 v%d, v%d, 4, v%d' % (t, t, vT[1])))
        else:
            a(I('v_lshl_add_u32 v%d, v%d, 4, v%d' % (t, vT[2], vT[1])))
        a(I('v_add_u32 v%d, 0x%x, v%d' % (vSOFF[i], 8 * i * rs - 1024 * i, t)))
    return res

def staging_dma(srdreg, ldsreg, slot, chunk):
    res = [I('s_add_u32 m0, s%d, %d' % (ldsreg, slot * 4096)), I('s_movk_i32 s%d, %d' % (sCK, chunk * 128))]
    for i in range(4):
        res.append(I('buffer_load_dwordx4 v%d, s[%d:%d], s%d offen offset:%d lds' % (vSOFF[i], srdreg, srdreg + 3, sCK, i * 1024), tag=('cd', next_id())))
    return res

def c_reads(eng, chunk):
    res = []
    for sp in range(2):
        for t in range(2):
            eng.uid += 1
            res.append(I('ds_read_b128 %s, v%d offset:%d' % (cfrag(2 * chunk + sp, t), vRD[sp], (chunk % 2) * 4096 + t * 2048), tag=('c', eng.uid)))
    return res

def segment(eng, st, nxt, pre_tags, streams, pending, wtags=None, issued=None):
    S_ = nslots(st); nu = st['nu']; sg0 = eng.sigma
    mf = []
    rd = Stream('wreads', prio=5, pace=1)
    tags = {i: pre_tags[i] for i in range(PRE)}
    for slot in range(S_):
        kp, u = divmod(slot, nu)
        if slot + PRE < S_:
            r = eng.reads(st, slot + PRE, sg0 + slot + PRE)
            tags[slot + PRE] = [x.tag for x in r]
            for q, x in enumerate(r): rd.add(x, e=4 * slot - 1, d=4 * slot + q)
    for slot in range(S_):
        kp, u = divmod(slot, nu)
        for t in range(2):
            for hf in range(2):
                s = 2 * kp + hf
                cls, b = eng.ring(sg0 + slot, st['ring_a'], hf)
                wf = '%s[%d:%d]' % (cls, b, b + 3)
                rf = st['res'](st['k0'] + s, t)
                d = vr(acc(st['acc'], u, t))
                c = '0' if (st['first'] and s == 0) else d
                if st.get('out') is not None and s == st['nk'] - 1: d = vr(acc(st['out'], u, t))
                need = ()
                if t == 0 and hf == 0:
                    need = list(tags[slot])
                    if slot % 2 == 0 and slot + 1 < S_ and slot + 1 >= PRE: need += tags[slot + 1]
                mf.append(I(mfma(d, rf, wf, c) if st['swap'] else mfma(d, wf, rf, c), need=need))
    n = len(mf)
    nxt_tags = None
    bar_gap = 4 * (S_ - PRE) + 3
    bs = Stream('bar', prio=9)
    if nxt is not None:
        bs.add(I('s_waitcnt lgkmcnt(0)', vneed=wtags if 'nowait' not in ABL else ()), e=bar_gap, d=bar_gap)
        if 'nobar' not in ABL: bs.add(I('s_barrier'), e=bar_gap, d=bar_gap)
        if STAMP:
            for x in stamp_ops(): bs.add(x, e=bar_gap, d=bar_gap)
        nxt_tags = []
        k = 0
        for ps in range(PRE):
            r = eng.reads(nxt, ps, sg0 + S_ + ps)
            nxt_tags.append([x.tag for x in r])
            for q, x in enumerate(r):
                e = bar_gap + 1 + k // 2 if ps < 2 else 4 * (S_ - 1) + q - 1
                k += 1
                e = min(max(e, bar_gap + 1), n - 1)
                bs.add(x, e=e, d=e)
    eng.sigma = sg0 + S_
    extra = []
    if st.get('mid_bar'):
        mb = Stream('midbar', prio=9)
        mb.add(I('s_waitcnt vmcnt(63)', tag='MID'), e=st['mid_bar'], d=st['mid_bar'])
        mb.add(I('s_barrier'), e=st['mid_bar'], d=st['mid_bar'])
        extra.append(mb)
    seq = pack(mf, extra + [rd, bs] + streams, budget=8, vm_gap=VM_GAP)
    for i, x in enumerate(seq):
        if x.tag == 'MID':
            seq[i] = I('s_waitcnt vmcnt(%d)' % sum(1 for y in seq[:i] if y.k == 'vmem'))
    seq = insert_vm_waits(seq, issued if issued is not None else [])
    seq, pend = insert_lgkm_waits(seq, pending)
    return seq, nxt_tags, pend, n

def store(src, voff, off, so=None):
    if 'nost' in ABL: return I('s_nop 0')
    return I('buffer_store_dwordx4 %s, v%d, s[%d:%d], s%d offen offset:%d%s' % (vr(src), voff, SWS, SWS + 3, sOUT if so is None else so, off, ST_FLAGS))

def epilogue(kind, outb, soff, scale=False):
    ops = [(-1, I(x)) for x in soff]
    frs = []
    if kind in ('q', 'k'):
        for p in range(2):
            for t in range(2): frs.append(((2 * p, t), (2 * p + 1, t), vL16 if t == 0 else vL16B, p * 1024))
    else:
        for u in range(4): frs.append(((u, 0), (u, 1), vL16, u * 1024))
    for (A, B, voff, off) in frs:
        dst = acc(outb, *A)
        for half, (u, t) in enumerate((A, B)):
            a0 = acc(outb, u, t); e = 4 * u + 2 * t + 1 - 16 + 6
            if scale and 'noscale' not in ABL:
                for r in range(4): ops.append((e, I('v_mul_f32 v%d, s%d, v%d' % (a0 + r, sQSC, a0 + r))))
            ops.append((e, I('v_cvt_pk_bf16_f32 v%d, v%d, v%d' % (dst + 2 * half, a0, a0 + 1))))
            ops.append((e, I('v_cvt_pk_bf16_f32 v%d, v%d, v%d' % (dst + 2 * half + 1, a0 + 2, a0 + 3))))
        ops.append((e, store(dst, voff, off)))
    res = []; last = -1
    for (e, ins) in ops:
        last = max(last, e); res.append((last, ins))
    return res

def epi_stream(items, dl, st_e):
    s = Stream('epi', prio=2)
    for (e, ins) in items:
        if ins.k != 'vmem' or ins.t.startswith('s_nop'): s.add(ins, e=e, d=dl)
    for (e, ins) in items:
        if ins.k == 'vmem': s.add(ins, e=st_e, d=dl)
    return s

def gelu_stream(gbase, nu, name):
    st = Stream(name, prio=1, elastic=True)
    if 'nogelu' in ABL: return st
    for u in range(nu):
        for t in range(2):
            a0 = acc(gbase, u, t); T = vT[4:8]
            for r in range(4): st.add('v_mul_f32 v%d, v%d, v%d' % (T[r], a0 + r, a0 + r))
            for r in range(4): st.add('v_fma_f32 v%d, v%d, v%d, s%d' % (T[r], T[r], vC2, sC1))
            for r in range(4): st.add('v_mul_f32 v%d, v%d, v%d' % (T[r], a0 + r, T[r]))
            for r in range(4): st.add('v_exp_f32 v%d, v%d' % (T[r], T[r]))
            for r in range(4): st.add('v_fma_f32 v%d, v%d, v%d, v%d' % (T[r], T[r], vIO[t], vIO[t]))
            for r in range(4): st.add('v_rcp_f32 v%d, v%d' % (T[r], T[r]))
            for r in range(4): st.add('v_mul_f32 v%d, v%d, v%d' % (a0 + r, a0 + r, T[r]))
    return st


def ffn_finish(st, gbase, ubase, nu, dg, e0):
    st.add('s_add_u32 s%d, s%d, %d' % (sHOUT, sHO, dg * 4096), e=e0)
    for p_ in range(2):
        for t in range(2):
            dst = acc(ubase, 2 * p_, t)
            for half in range(2):
                u = 2 * p_ + half
                if u < nu:
                    g0 = acc(gbase, u, t); u0 = acc(ubase, u, t)
                    for r in range(4): st.add('v_mul_f32 v%d, v%d, v%d' % (g0 + r, g0 + r, u0 + r), e=e0)
                    st.add('v_cvt_pk_bf16_f32 v%d, v%d, v%d' % (dst + 2 * half, g0, g0 + 1), e=e0)
                    st.add('v_cvt_pk_bf16_f32 v%d, v%d, v%d' % (dst + 2 * half + 1, g0 + 2, g0 + 3), e=e0)
                else:
                    st.add('v_mov_b32 v%d, 0' % (dst + 2 * half), e=e0)
                    st.add('v_mov_b32 v%d, 0' % (dst + 2 * half + 1), e=e0)
            st.add(store(dst, vL16, p_ * 2048 + t * 1024, so=sHOUT), e=e0)

def spread(name, ins, n, lo=0.0, hi=0.55, dl=0.62, prio=3):
    s = Stream(name, prio=prio)
    for i, x in enumerate(ins):
        e = int(n * (lo + (hi - lo) * i / len(ins)))
        s.add(x, e=e - 1 if i == 0 else e, d=int(n * dl))
    return s

def pstamp(p):
    if STAMP:
        p('s_waitcnt lgkmcnt(0)')
        p(stamp_ops())

def pf_w(stages, n):
    st = stages[n]
    so = [x.replace('s%d,' % sSOFF, 's%d,' % sPFO, 1) for x in st['soff']]
    return [I(x) for x in so] + [pf(vPFF if st['srd'] in (SWG, SWU) else vPFQ, st['srd'], sPFO)]

def pf_c(pair):
    return [I('s_movk_i32 s%d, %d' % (sPFO, pair * 256)), pf(vPFC, SC, sPFO)]

def pf_kv_static(G):
    return [I('s_add_u32 s%d, s%d, %d' % (sPFO, sCOL, G * 128)), pf(vPFK, SWK, sPFO)]

def pf_kv_loop():
    return [I('s_add_u32 s%d, s%d, 2' % (sT0, sGI)),
            GL('s_cmp_lt_u32 s%d, 4' % sT0, 's_cselect_b32 s%d, s%d, s%d' % (SPF, SWK, SWV), 's_cselect_b32 s%d, s%d, s%d' % (SPF + 1, SWK + 1, SWV + 1)),
            I('s_and_b32 s%d, s%d, 3' % (sT1, sT0)), I('s_lshl_b32 s%d, s%d, 7' % (sT1, sT1)), I('s_add_u32 s%d, s%d, s%d' % (sPFO, sCOL, sT1)),
            GL('s_cmp_lt_u32 s%d, 8' % sT0, 's_cselect_b32 s%d, s%d, 0x10000000' % (sPFO, sPFO)), pf(vPFK, SPF, sPFO)]

def flush(p, stream, issued=None):
    for (_, _, x) in stream.items:
        p(x)
        if issued is not None and x.k == 'vmem': issued.append(('flushed', id(x)))
    stream.items = []

def kv_stage(kind, half, srd_, soff, buf):
    return dict(nk=16, nu=4, k0=16 * half, first=(half == 0), res=cfrag, swap=(kind == 'v'), acc=ACCKV, ring_a=False,
                srd=srd_, soff=soff, buf=buf, out=TMPKV if half == 1 else None)

def epi_soff(kind):
    if kind == 'k': return ['s_lshl_b32 s%d, s%d, 4' % (sOUT, sGRP), 's_add_u32 s%d, s%d, s%d' % (sOUT, sOUT, sKO)]
    return ['s_lshl_b32 s%d, s%d, 5' % (sOUT, sGRP), 's_add_u32 s%d, s%d, s%d' % (sOUT, sOUT, sKO), 's_add_u32 s%d, s%d, 0x4000' % (sOUT, sOUT)]

def build():
    p = Prog()
    eng = Eng()
    p('%s:' % NAME)
    p('s_cmp_ge_u32 s2, 256')
    p('s_cbranch_scc1 L_k1_end')
    p('s_load_dwordx16 s[%d:%d], s[0:1], 0' % (sKPTR, sKPTR + 15))
    p('s_load_dwordx8 s[%d:%d], s[0:1], 64' % (sKPTR + 16, sKPTR + 23))
    p('s_load_dwordx4 s[%d:%d], s[0:1], 96' % (sKPTR + 24, sKPTR + 27))
    p('s_getpc_b64 s[92:93]')
    p('s_mov_b32 s94, 0xc000')
    p('s_mov_b32 s95, 0x20000')
    p('s_lshr_b32 s3, s2, 3')
    p('s_lshl_b32 s3, s3, 11')
    p('v_lshlrev_b32 v3, 7, v0')
    p('v_mov_b32 v4, 0x7ff00000')
    p('v_cmp_gt_u32 vcc, 16, v0')
    p('s_nop 1')
    p('v_cndmask_b32 v3, v4, v3, vcc')
    p('buffer_load_dword v%d, v3, s[92:95], s3 offen' % vDUM)
    p('v_lshrrev_b32 v3, 6, v0')
    p('v_and_b32 v%d, 63, v0' % vLANE)
    p('v_readfirstlane_b32 s%d, v3' % sW)
    p('s_and_b32 s3, s2, 7')
    p('s_lshr_b32 s%d, s2, 3' % sT0)
    if not MAPB:
        p('s_and_b32 s%d, s%d, 1' % (sT1, sT0))
        p('s_lshl_b32 s3, s3, 1')
        p('s_add_u32 s%d, s3, s%d' % (sH, sT1))
        p('s_lshr_b32 s%d, s%d, 1' % (sB, sT0))
        p('s_mov_b32 s%d, s%d' % (sGI, sB))
    else:
        p('s_lshr_b32 s%d, s3, 1' % sT1)
        p('s_lshl_b32 s%d, s%d, 2' % (sT1, sT1))
        p('s_and_b32 s%d, s%d, 3' % (sH, sT0))
        p('s_add_u32 s%d, s%d, s%d' % (sH, sH, sT1))
        p('s_lshr_b32 s%d, s%d, 2' % (sGI, sT0))
        p('s_and_b32 s3, s3, 1')
        p('s_lshl_b32 s3, s3, 3')
        p('s_add_u32 s%d, s3, s%d' % (sB, sGI))
    p('s_lshl_b32 s%d, s%d, 2' % (sRB, sB))
    p('s_add_u32 s%d, s%d, s%d' % (sRB, sRB, sW))
    p('v_lshlrev_b32 v%d, 4, v%d' % (vL16, vLANE))
    p('v_add_u32 v%d, 0x2000, v%d' % (vL16B, vL16))
    p('s_mul_i32 s%d, s%d, %d' % (sM0W, sW, 14 * 1024))
    p('s_mul_i32 s%d, s%d, %d' % (sM0W16, sW, 16 * 1024))
    p('s_mul_i32 s%d, s%d, %d' % (sXB, sW, 28 * 1024))
    p('s_add_u32 s%d, s%d, %d' % (sXB, sXB, 48 * 1024))
    p('s_lshl_b32 s%d, s%d, 13' % (sCB, sW))
    p('s_add_u32 s%d, s%d, %d' % (sCB, sCB, 128 * 1024))
    p('s_lshl_b32 s%d, s%d, 9' % (sCOL, sH))
    p('s_lshl_b32 s%d, s%d, 8' % (sCOLF, sH))
    p('s_cmp_lt_u32 s%d, 14' % sH)
    p('s_cselect_b32 s%d, s%d, 0x10000000' % (sCOLF, sCOLF))
    p('s_mov_b32 s%d, %s' % (sQSC, hexf(LOG2E / 16.0)))
    c1 = -2.0 * LOG2E * 0.7978845608028654
    p('s_mov_b32 s%d, %s' % (sC1, hexf(c1)))
    p('v_mov_b32 v%d, %s' % (vC2, hexf(c1 * 0.044715)))
    p('s_lshl_b32 s%d, s%d, 6' % (sT0, sH))
    p('s_add_u32 s%d, s%d, s%d' % (sT0, sT0, sRB))
    p('s_lshl_b32 s%d, s%d, 14' % (sQO, sT0))
    p('s_add_u32 s%d, s%d, 0x%x' % (sQO, sQO, WS_Q))
    p('s_lshl_b32 s%d, s%d, 15' % (sKO, sT0))
    p('s_lshl_b32 s%d, s%d, 4' % (sT0, sRB))
    p('s_add_u32 s%d, s%d, s%d' % (sT0, sT0, sH))
    p('s_lshl_b32 s%d, s%d, 13' % (sHO, sT0))
    p('s_add_u32 s%d, s%d, 0x%x' % (sHO, sHO, WS_H))
    p('s_waitcnt lgkmcnt(0)')
    kp = lambda n: sKPTR + KA[n] // 4
    srd(p, SX, kp('x'), SZ['x']); srd(p, SC, kp('c'), SZ['c']); srd(p, SWQ, kp('wq'), SZ['wq'])
    srd(p, SWG, kp('wg'), SZ['wg']); srd(p, SWU, kp('wu'), SZ['wu']); srd(p, SWK, kp('wuk'), SZ['wuk'])
    srd(p, SWV, kp('wuv'), SZ['wuv']); srd(p, SWS, kp('ws'), SZ['ws']); srd(p, SGW, kp('gw'), SZ['gw'])
    srd(p, SNX, kp('wuk'), SZ['wuk'])
    kp2 = lambda n: {'wo': sKPTR + KA['wo'] // 4, 'wd': sKPTR + KA['wd'] // 4}[n]
    if STAMP:
        p('s_lshl_b32 s94, s2, 2')
        p('s_add_u32 s94, s94, s%d' % sW)
        p('s_lshl_b32 s94, s94, 8')
        p('s_add_u32 s94, s94, 0x%x' % WS_DBG)
        p('s_memrealtime s[92:93]')
        p('s_waitcnt lgkmcnt(0)')
        p(stamp_ops())
        p('s_waitcnt lgkmcnt(0)')
    rw = 16 if MAPB else 8
    p('s_lshl_b32 s%d, s%d, 2' % (sT0, sGI))
    p('s_add_u32 s%d, s%d, s%d' % (sT0, sT0, sW))
    p('v_and_b32 v%d, %d, v%d' % (vT[0], rw - 1, vLANE))
    p('s_mul_i32 s%d, s%d, %d' % (sT1, sT0, rw))
    p('v_add_u32 v%d, s%d, v%d' % (vT[0], sT1, vT[0]))
    p('v_cmp_gt_u32 vcc, %d, v%d' % (rw, vLANE))
    p('v_mov_b32 v%d, 0x7ff00000' % vT[3])
    p('v_lshlrev_b32 v%d, 13, v%d' % (vT[4], vT[0]))
    p('v_cndmask_b32 v%d, v%d, v%d, vcc' % (vPFQ, vT[3], vT[4]))
    p('v_mul_u32_u24 v%d, 3584, v%d' % (vT[4], vT[0]))
    p('v_cndmask_b32 v%d, v%d, v%d, vcc' % (vPFF, vT[3], vT[4]))
    p('v_and_b32 v%d, %d, v%d' % (vT[0], 2 * rw - 1, vLANE))
    p('s_lshl_b32 s%d, s%d, 1' % (sT1, sT1))
    p('v_add_u32 v%d, s%d, v%d' % (vT[0], sT1, vT[0]))
    p('v_cmp_gt_u32 vcc, %d, v%d' % (2 * rw, vLANE))
    p('v_lshlrev_b32 v%d, 13, v%d' % (vT[4], vT[0]))
    p('s_nop 0')
    p('v_cndmask_b32 v%d, v%d, v%d, vcc' % (vPFK, vT[3], vT[4]))
    p(staging_offsets(M * 2))
    for ch in range(7): p(staging_dma(SX, sXB, ch, ch))
    stages = []
    for dg in range(2):
        so = ['s_add_u32 s%d, s%d, %d' % (sSOFF, sCOLF, dg * 128)]
        stages.append(dict(nk=14, nu=4, k0=0, first=True, res=xfrag, swap=False, acc=ACCG if dg == 0 else TMP, ring_a=True, srd=SWG, soff=so))
        stages.append(dict(nk=14, nu=4, k0=0, first=True, res=xfrag, swap=False, acc=ACCU if dg == 0 else ACCX, ring_a=True, srd=SWU, soff=so))
    for G in range(4):
        stages.append(dict(nk=14, nu=4, k0=0, first=True, res=xfrag, swap=False, acc=ACCG, out=ACCU, ring_a=True, srd=SWQ,
                           soff=['s_add_u32 s%d, s%d, %d' % (sSOFF, sCOL, G * 128)]))
    for i, st in enumerate(stages): st['buf'] = i % 2
    stages.append(kv_stage('k', 0, SWK, ['s_mov_b32 s%d, s%d' % (sSOFF, sCOL)], 0))
    stages.append(kv_stage('k', 1, SWK, ['s_add_u32 s%d, s%d, %d' % (sSOFF, sCOL, 512 * 8192)], 1))
    st0 = stages[0]
    st0['mid_bar'] = 76
    p(doff_setup(14, F * 2))
    p(st0['soff'])
    p('s_cmp_eq_u32 s%d, 3' % sW)
    p('s_cbranch_scc1 L_k1_w3a')
    p(dma_w(st0)[1:])
    p('s_branch L_k1_w3b')
    p('L_k1_w3a:')
    p(dma_w(st0, 0, 6)[1:])
    p('L_k1_w3b:')
    p('v_lshrrev_b32 v%d, 4, v%d' % (vT[0], vLANE))
    p('v_lshlrev_b32 v%d, 4, v%d' % (vT[0], vT[0]))
    p('s_mov_b32 exec_lo, 0x00010001')
    p('s_mov_b32 exec_hi, 0x00010001')
    for s in range(14):
        p('buffer_load_dwordx4 %s, v%d, s[%d:%d], 0 offen offset:%d' % (ar(4 * s), vT[0], SGW, SGW + 3, 64 * s))
    p('s_mov_b64 exec, -1')
    npf = 0
    if USE_PF:
        nsh = 8 if MAPB else 16
        rows = 448 // (nsh * 4)
        p('s_lshl_b32 s%d, s%d, 2' % (sT0, sGI))
        p('s_add_u32 s%d, s%d, s%d' % (sT0, sT0, sW))
        p('s_mul_i32 s%d, s%d, %d' % (sT0, sT0, rows))
        p('v_mov_b32 v%d, 0x7ff00000' % vT[3])
        for (shift, rs_, srds, so) in ((1, 3584, (SWG, SWU), sCOLF), (2, 8192, (SWQ,), sCOL)):
            per = 64 >> shift
            for part in range((rows + per - 1) // per):
                p('v_lshrrev_b32 v%d, %d, v%d' % (vT[0], shift, vLANE))
                if part: p('v_add_u32 v%d, %d, v%d' % (vT[0], part * per, vT[0]))
                p('v_cmp_gt_u32 vcc, %d, v%d' % (rows, vT[0]))
                p('v_add_u32 v%d, s%d, v%d' % (vT[0], sT0, vT[0]))
                p('v_mul_u32_u24 v%d, %d, v%d' % (vT[0], rs_, vT[0]))
                p('v_and_b32 v%d, %d, v%d' % (vT[1], (1 << shift) - 1, vLANE))
                p('v_lshl_add_u32 v%d, v%d, 7, v%d' % (vT[0], vT[1], vT[0]))
                p('v_cndmask_b32 v%d, v%d, v%d, vcc' % (vT[0], vT[3], vT[0]))
                for sr in srds:
                    p(pf(vT[0], sr, so)); npf += 1
        p('s_lshl_b32 s%d, s2, 14' % sT1)
        p('s_lshl_b32 s%d, s%d, 12' % (sT2, sW))
        p('s_add_u32 s%d, s%d, s%d' % (sPFO, sT1, sT2))
        p('v_lshlrev_b32 v%d, 7, v%d' % (vT[0], vLANE))
        p('v_cmp_gt_u32 vcc, 32, v%d' % vLANE)
        p('s_nop 1')
        p('v_cndmask_b32 v%d, v%d, v%d, vcc' % (vT[0], vT[3], vT[0]))
        p(pf(vT[0], SC, sPFO)); npf += 1
        for x in pf_kv_static(0):
            p(x); npf += (x.k == 'vmem')
    p('v_lshrrev_b32 v%d, 4, v%d' % (vT[0], vLANE))
    p('v_bfe_u32 v%d, v%d, 2, 2' % (vT[1], vLANE))
    p('v_and_b32 v%d, 3, v%d' % (vT[2], vLANE))
    p('v_lshl_add_u32 v%d, v%d, 3, v%d' % (vT[3], vT[0], vT[1]))
    p('v_lshlrev_b32 v%d, 7, v%d' % (vT[3], vT[3]))
    p('v_lshl_add_u32 v%d, v%d, 3, v%d' % (vT[3], vT[2], vT[3]))
    p('v_lshrrev_b32 v%d, 1, v%d' % (vT[4], vT[1]))
    p('v_and_b32 v%d, 1, v%d' % (vT[5], vT[0]))
    p('v_lshlrev_b32 v%d, 1, v%d' % (vT[5], vT[5]))
    p('v_xor_b32 v%d, v%d, v%d' % (vT[4], vT[4], vT[5]))
    for v in range(4):
        p('v_xor_b32 v%d, %d, v%d' % (vT[5], v, vT[4]))
        p('v_lshl_add_u32 v%d, v%d, 5, v%d' % (vVA[v], vT[5], vT[3]))
        p('v_add_u32 v%d, 0x10000, v%d' % (vVB[v], vVA[v]))
    p('v_and_b32 v%d, 15, v%d' % (vT[1], vLANE))
    p('v_bfe_u32 v%d, v%d, 1, 3' % (vT[2], vLANE))
    p('v_xor_b32 v%d, v%d, v%d' % (vT[2], vT[2], vT[0]))
    p('v_lshlrev_b32 v%d, 7, v%d' % (vT[1], vT[1]))
    p('v_lshl_add_u32 v%d, v%d, 4, v%d' % (vRD[0], vT[2], vT[1]))
    p('v_xor_b32 v%d, 64, v%d' % (vRD[1], vRD[0]))
    p('v_add_u32 v%d, s%d, v%d' % (vT[6], sXB, vRD[0]))
    p('v_add_u32 v%d, s%d, v%d' % (vT[7], sXB, vRD[1]))
    p('v_add_u32 v%d, s%d, v%d' % (vRD[0], sCB, vRD[0]))
    p('v_add_u32 v%d, s%d, v%d' % (vRD[1], sCB, vRD[1]))
    pstamp(p)
    p('s_waitcnt vmcnt(%d)' % (npf + (1 if STAMP else 0)))
    pstamp(p)
    for ch in range(7):
        for sp in range(2):
            for t in range(2):
                p('ds_read_b128 %s, v%d offset:%d' % (xfrag(2 * ch + sp, t), vT[6 + sp], ch * 4096 + t * 2048))
    p(staging_offsets(DC * 2))
    p('s_waitcnt lgkmcnt(0)')
    p('s_barrier')
    pstamp(p)
    p('s_cmp_eq_u32 s%d, 3' % sW)
    p('s_cbranch_scc0 L_k1_w3c')
    p(dma_w(st0, 6, 14)[1:])
    p('L_k1_w3c:')
    pre = []
    for ps in range(PRE):
        r = eng.reads(stages[0], ps, ps); pre.append([x.tag for x in r]); p(r)
    for t in range(2):
        for s in range(14):
            p(mfma(vr(TMP + 4 * t), ar(4 * s), xfrag(s, t), '0' if s == 0 else vr(TMP + 4 * t)))
    p('v_and_b32 v%d, 15, v%d' % (vT[4], vLANE))
    p('v_lshlrev_b32 v%d, 2, v%d' % (vT[4], vT[4]))
    p('s_nop 7')
    for t in range(2): p('ds_bpermute_b32 v%d, v%d, v%d' % (vT[t], vT[4], TMP + 4 * t))
    p('s_waitcnt lgkmcnt(0)')
    for t in range(2): p('v_mul_f32 v%d, %s, v%d' % (vT[t], hexf(-LOG2E), vT[t]))
    for t in range(2): p('v_exp_f32 v%d, v%d' % (vT[t], vT[t]))
    p('s_nop 0')
    for t in range(2): p('v_add_f32 v%d, 1.0, v%d' % (vT[t], vT[t]))
    for t in range(2): p('v_rcp_f32 v%d, v%d' % (vT[t], vT[t]))
    p('s_nop 0')
    for t in range(2):
        p('v_sub_f32 v%d, 1.0, v%d' % (vT[2 + t], vT[t]))
        p('v_max_f32 v%d, 0x0da24260, v%d' % (vT[2 + t], vT[2 + t]))
    for t in range(2): p('v_rcp_f32 v%d, v%d' % (vIO[t], vT[2 + t]))
    p('s_cmp_eq_u32 s%d, 0' % sH)
    p('s_cbranch_scc0 L_k1_nog')
    p('v_and_b32 v%d, 15, v%d' % (vT[4], vLANE))
    p('v_lshlrev_b32 v%d, 2, v%d' % (vT[4], vT[4]))
    p('s_lshl_b32 s%d, s%d, 7' % (sT0, sRB))
    p('s_add_u32 s%d, s%d, 0x%x' % (sT0, sT0, WS_G))
    p('buffer_store_dword v%d, v%d, s[%d:%d], s%d offen' % (vT[0], vT[4], SWS, SWS + 3, sT0))
    p('buffer_store_dword v%d, v%d, s[%d:%d], s%d offen offset:64' % (vT[1], vT[4], SWS, SWS + 3, sT0))
    p('v_mov_b32 v%d, 0' % vT[5])
    p('v_lshlrev_b32 v%d, 2, v%d' % (vT[6], vLANE))
    p('s_lshl_b32 s%d, s%d, 8' % (sT0, sRB))
    p('s_add_u32 s%d, s%d, 0x%x' % (sT0, sT0, WS_FL))
    p('buffer_store_dword v%d, v%d, s[%d:%d], s%d offen' % (vT[5], vT[6], SWS, SWS + 3, sT0))
    p('L_k1_nog:')
    p('s_waitcnt lgkmcnt(0)')
    if STAMP:
        p(stamp_ops())
    pend = []
    carry = None; g0 = g1 = None; issued = []; ctags = None
    loop_a = kv_stage('k', 0, SNX, ['s_add_u32 s%d, s%d, 128' % (sSOFF, sCOL)], 0)
    for n_, st in enumerate(stages):
        nxt = stages[n_ + 1] if n_ + 1 < len(stages) else loop_a
        nm = nslots(st) * 4
        streams = []
        d = []
        wd = dma_w(nxt)
        if 'nodma' in ABL and n_ < 8: wd = [x for x in wd if x.k != 'vmem'] + [I('buffer_load_dword v%d, v%d, s[%d:%d], 0 offen' % (vDUM, vL16, SX, SX + 3), tag=('wd', next_id()))]
        wtags = [x.tag for x in wd if x.tag]
        d += wd
        ds_ = Stream('dma', prio=5)
        nw = sum(1 for x in d if x.k == 'vmem')
        wend = int(nw * VM_GAP) + 6
        for x in d: ds_.add(x, e=-1, d=max(wend, int(nm * 0.62)))
        su = Stream('setup', prio=3)
        if n_ == 2:
            for x in doff_setup(14, H * D * 2): su.add(x, e=wend + 2, d=int(nm * 0.95))
        if n_ == 6:
            for x in doff_setup(16, H * D * 2): su.add(x, e=wend + 2, d=int(nm * 0.95))
        streams.append(su)
        cs = Stream('cload', prio=2)
        rs = []
        rd_pair = {1: 0, 2: 1, 3: 2, 4: 3, 5: 4, 6: 5, 8: 6, 9: 7}.get(n_)
        ld_pair = {0: 0, 1: 1, 2: 2, 3: 3, 4: 4, 5: 5, 6: 6, 8: 7}.get(n_)
        if rd_pair is not None and 'noc' not in ABL:
            rs = c_reads(eng, 2 * rd_pair) + c_reads(eng, 2 * rd_pair + 1)
            rs[0] = I(rs[0].t, tag=rs[0].tag, vneed=ctags)
            lo = C_READ_AT
            for x in rs: cs.add(x, e=int(nm * lo), d=int(nm * (lo + 0.15)))
        if ld_pair is not None and 'noc' not in ABL:
            dm = staging_dma(SC, sCB, 0, 2 * ld_pair) + staging_dma(SC, sCB, 1, 2 * ld_pair + 1)
            ctags = [x.tag for x in dm if x.tag]
            if rs: dm[0] = I(dm[0].t, need=[y.tag for y in rs])
            for i_, x in enumerate(dm): ds_.add(x, e=max(wend - 4, int(nm * (C_READ_AT + 0.16))), d=nm - 10)
        if USE_PF:
            pfl = []
            if n_ <= 4: pfl += pf_w(stages, n_ + 3)
            if n_ == 7: early = pf_kv_static(1)
            elif n_ == 9: early = pf_kv_static(2)
            else: early = []
            for x in early: ds_.add(x, e=wend - 4, d=nm - 10)
            for x in pfl: ds_.add(x, e=wend, d=nm - 10)
        streams.append(ds_)
        streams.append(cs)
        if carry is not None: streams.append(epi_stream(carry, nm - 20, wend))
        newcarry = None
        if 4 <= n_ < 8: newcarry = epilogue('q', ACCU, ['s_add_u32 s%d, s%d, %d' % (sOUT, sQO, (n_ - 4) * 2048)])
        if n_ == 9: newcarry = epilogue('k', TMPKV, ['s_mov_b32 s%d, s%d' % (sOUT, sKO)], scale=True)
        if n_ == 1:
            g0 = gelu_stream(ACCG, 4, 'gelu'); g0.prio = 2; g0.items = [(6, dd, x) for (_, dd, x) in g0.items]
        if n_ == 2: ffn_finish(g0, ACCG, ACCU, 4, 0, 6)
        if n_ == 3:
            g1 = gelu_stream(TMP, 4, 'gelu1')
            tail1 = [(6, dd, x) for (_, dd, x) in g1.items]
            n0 = len(g0.items)
            g0.items += tail1
        if n_ == 4: ffn_finish(g0, TMP, ACCX, 4, 1, 6)
        if 1 <= n_ <= 9: streams.append(g0)
        seq, pre, pend, n = segment(eng, st, nxt, pre, streams, pend, wtags, issued)
        p(seq)
        if n_ == 3:
            left = len(g0.items) - len(tail1)
            if left > 0:
                head = Stream('x'); head.items = g0.items[:left]; g0.items = g0.items[left:]
                flush(p, head, issued)
            print('k1: first FFN group leftovers at end of stage 3:', max(left, 0))
        if n_ == 9:
            print('k1: second FFN group leftovers at end of stage 9:', len(g0.items))
            flush(p, g0, issued)
        carry = newcarry
    def wo_prefetch():
        srd(p, SWQ, kp2('wo'), SZ['wo']); srd(p, SWG, kp2('wd'), SZ['wd'])
        p('s_mul_i32 s%d, s2, %d' % (sT0, 14336))
        p('s_mul_i32 s%d, s%d, %d' % (sT1, sW, 3584))
        p('s_add_u32 s%d, s%d, s%d' % (sT0, sT0, sT1))
        p('v_lshlrev_b32 v%d, 7, v%d' % (vT[0], vLANE))
        p('v_mov_b32 v%d, 0x7ff00000' % vT[3])
        p('v_cmp_gt_u32 vcc, 28, v%d' % vLANE)
        p('s_mul_i32 s%d, s2, %d' % (sT2, 6272))
        p('s_mul_i32 s%d, s%d, %d' % (sT1, sW, 1568))
        p('v_cndmask_b32 v%d, v%d, v%d, vcc' % (vT[1], vT[3], vT[0]))
        p('s_add_u32 s%d, s%d, s%d' % (sT2, sT2, sT1))
        p('v_cmp_gt_u32 vcc, 14, v%d' % vLANE)
        p(pf(vT[1], SWQ, sT0))
        p('s_nop 0')
        p('v_cndmask_b32 v%d, v%d, v%d, vcc' % (vT[1], vT[3], vT[0]))
        p(pf(vT[1], SWG, sT2))
    def kv_loop(kind, label, count, pre, pend):
        own = SWK if kind == 'k' else SWV
        p('s_movk_i32 s%d, %d' % (sCNT, count))
        p(label + ':')
        a = kv_stage(kind, 0, own, None, 0)
        b = kv_stage(kind, 1, own, ['s_add_u32 s%d, s%d, s%d' % (sSOFF, sCOL, sGRP), 's_add_u32 s%d, s%d, %d' % (sSOFF, sSOFF, 512 * 8192)], 1)
        nx = ['s_cmp_eq_u32 s%d, 1' % sCNT, 's_add_u32 s%d, s%d, 128' % (sNXO, sGRP)]
        nx = ['s_add_u32 s%d, s%d, 128' % (sNXO, sGRP), 's_add_u32 s%d, s%d, s%d' % (sNXO, sNXO, sCOL)]
        if kind == 'k':
            nx += [GL('s_cmp_eq_u32 s%d, 1' % sCNT, 's_cselect_b32 s%d, s%d, s%d' % (sSOFF, sCOL, sNXO),
                     's_cselect_b32 s%d, s%d, s%d' % (SNX, SWV, SWK), 's_cselect_b32 s%d, s%d, s%d' % (SNX + 1, SWV + 1, SWK + 1))]
        else:
            nx += [GL('s_cmp_eq_u32 s%d, 1' % sCNT, 's_cselect_b32 s%d, 0x10000000, s%d' % (sSOFF, sNXO))]
        c = kv_stage(kind, 0, SNX, nx, 0)
        cout = epilogue(kind, TMPKV, [], scale=(kind == 'k'))
        db = dma_w(b)
        dstream = Stream('dma', prio=5)
        for x in db: dstream.add(x, e=-1, d=80)
        if USE_PF:
            for x in pf_kv_loop(): dstream.add(x, e=60, d=100)
        seq, pre1, pend1, n = segment(eng, a, b, pre, [dstream, epi_stream(cout, 112, 74)], pend, [x.tag for x in db if x.tag], [])
        p(seq)
        d = dma_w(c)
        so = Stream('sout', prio=1)
        for x in epi_soff(kind): so.add(I(x), e=70, d=100)
        dstream2 = Stream('dma', prio=5)
        for x in d: dstream2.add(x, e=-1, d=80)
        seq, pre2, pend2, n = segment(eng, b, c, pre1, [dstream2, so], pend1, [x.tag for x in d if x.tag], [])
        p(seq)
        p('s_add_u32 s%d, s%d, 1' % (sGI, sGI))
        p('s_add_u32 s%d, s%d, 128' % (sGRP, sGRP))
        p('s_sub_u32 s%d, s%d, 1' % (sCNT, sCNT))
        p('s_cmp_lg_u32 s%d, 0' % sCNT)
        p('s_cbranch_scc1 %s' % label)
        return cout
    flat = [t for grp in pre for t in grp]
    p('s_mov_b32 s%d, 0x%x' % (SPF + 2, SZ['wuk']))
    p('s_mov_b32 s%d, 0x20000' % (SPF + 3))
    p('s_mov_b32 s%d, s%d' % (SPF, SWK))
    p('s_mov_b32 s%d, s%d' % (SPF + 1, SWK + 1))
    p('s_movk_i32 s%d, 1' % sGI)
    p('s_mov_b32 s%d, s%d' % (sOUT, sKO))
    p('s_movk_i32 s%d, 128' % sGRP)
    cout = kv_loop('k', 'L_k1_kloop', 3, pre, flat)
    p('s_nop 7')
    p([x for (_, x) in cout])
    p('s_mov_b32 s%d, 0x10000000' % sOUT)
    p('s_movk_i32 s%d, 0' % sGRP)
    if USE_PF and END_PF == 'mid': wo_prefetch()
    cout = kv_loop('v', 'L_k1_vloop', 4, pre, flat)
    p('s_nop 7')
    p([x for (_, x) in cout])
    if USE_PF and END_PF == 'end': wo_prefetch()
    if STAMP:
        p('s_waitcnt vmcnt(0) lgkmcnt(0)')
        p(stamp_ops())
        p('s_waitcnt lgkmcnt(0)')
        p(stamp_ops())
        p('s_memrealtime s[92:93]')
        p('s_waitcnt lgkmcnt(0)')
        p(stamp_ops()[:3])
    p('L_k1_end:')
    p('s_endpgm')
    return p

if __name__ == '__main__':
    p = build()
    p.seq = fix_m0(p.seq)
    errs = lint(p.seq, 'k1')
    for e in errs[:30]: print(e)
    print(len(p.seq), 'instructions;', len(errs), 'lint errors')
    open('k1_body.s', 'w').write(p.text())
```

```python
from fw import *
from common import *

NAME = 'k2_attn_kernel'
STAMP = False
WS_DBG = 0x0c000000 + (1 << 20)
sW, sH, sJ, sROLE = 4, 5, 6, 7
SWS, SWO, SWD = 8, 12, 16
sKVB, sKB, sN, sMK, sB = 20, 21, 22, 23, 24
sM0, sT0, sT1, sT2, sT3 = 25, 26, 27, 28, 29
sPHASE, sCLAMP, sTHR, sRB, sSO = 30, 31, 32, 33, 34
sKB0, sCNT, sPM, sFL, sOUT = 35, 36, 37, 38, 39
sMSK = 40
sDIAG = 64
sRET = 48
sM0W, sSOA, sSOB, sPO = 50, 51, 52, 53
sM0L, sM0A, sM0B = 54, 55, 56
sEVT, sSLOT, sNXAT, sLAST, sPUBP, sINM = 57, 58, 59, 60, 61, 62
EXTRA = 131072
PART = 192
vSTAT = 226
sKPTR = 64
O0 = 0
S0, S1, E0, P0, P1, NEGM = 128, 144, 160, 176, 184, 192
vL = [200, 201]; vTS = [202, 203]; vM = [204, 205]
vCUR, vPRV, vL16, vDK, vLANE, vRG, vNINF = 206, 207, 208, 209, 210, 211, 212
vG = [213, 214]
vDKP = None
vT = list(range(215, 231))
vPA = [228, 230 - 4]
vVA = [231, 232, 233, 234]; vVB = [235, 236, 237, 238]; vVC = [8, 9, 10, 11]
PBUF = 49152
vDO = list(range(239, 251))
vST = [251, 252, 253, 254]
vDUM = 255
QF, KA_, KB_, VR, HF, WR = 0, 64, 96, 128, 160, 192
PK_ADD = False
ABL = set()
ATT_STEP = 4.6
ATT_START = 23
SPLIT = 36
ST_FLAGS = ''
vPFO, vPFD = 225, 230
vDP = [221, 222, 223, 224]

def vr(b, n=4): return 'v[%d:%d]' % (b, b + n - 1)
def ar(b, n=4): return 'a[%d:%d]' % (b, b + n - 1)
def mfma(d, a, b, c): return 'v_mfma_f32_16x16x32_bf16 %s, %s, %s, %s' % (d, a, b, c)
def Oacc(dt, qt): return O0 + 8 * dt + 4 * qt
def Sacc(buf, kt, qt): return (S0 if buf == 0 else S1) + 8 * kt + 4 * qt
def Ereg(kt, qt): return E0 + 8 * kt + 4 * qt
def Preg(buf, qt): return (P0 if buf == 0 else P1) + 4 * qt

def srd(p, base, ptr, size):
    p('s_mov_b32 s%d, s%d' % (base, ptr))
    p('s_and_b32 s%d, s%d, 0xffff' % (base + 1, ptr + 1))
    p('s_mov_b32 s%d, 0x%x' % (base + 2, size))
    p('s_mov_b32 s%d, 0x20000' % (base + 3))

_uid = [0]
def rd(dst, addr, off):
    _uid[0] += 1
    return I('ds_read_b128 %s, v%d offset:%d' % (dst, addr, off), tag=('r', _uid[0]))

def piece(lds_off, src_reg, src_add, m0reg=None):
    r = [I('s_add_u32 s%d, s%d, %d' % (sSO, src_reg, src_add)), I('s_add_u32 m0, s%d, %d' % (sM0 if m0reg is None else m0reg, lds_off))]
    for i in range(4):
        r.append(I('buffer_load_dwordx4 v%d, s[%d:%d], s%d offen offset:%d lds' % (vDK, SWS, SWS + 3, sSO, i * 1024)))
    return r

def qk_mfmas(sbuf, tagsA, tagsB):
    mf = []
    for kt in range(2):
        for qt in range(2):
            for s in range(8):
                d = vr(Sacc(sbuf, kt, qt))
                c = vr(NEGM + 4 * qt) if s == 0 else d
                need = ()
                if qt == 0 and kt == 0 and s % 4 == 0: need = tagsA[s:s + 4] if tagsA else ()
                if qt == 0 and kt == 1 and s == 0: need = tagsB if tagsB else ()
                mf.append(I(mfma(d, ar((KA_ if kt == 0 else KB_) + 4 * s), ar(QF + 32 * qt + 4 * s), c), need=need))
    return mf

def pv_mfmas(pbuf, vtags):
    mf = []
    for dt in range(16):
        for qt in range(2):
            d = vr(Oacc(dt, qt))
            need = ()
            if qt == 0 and dt % 4 == 0: need = [t for t in vtags[dt:dt + 4] if t]
            mf.append(I(mfma(d, ar(VR + 4 * (dt % 8)), vr(Preg(pbuf, qt)), d), need=need))
    return mf

def softmax_parts(sb):
    p1, p2 = [], []
    for qt in range(2):
        for i in range(4): p1.append(I('v_exp_f32 v%d, v%d' % (Ereg(0, qt) + i, Sacc(sb, 0, qt) + i)))
    for qt in range(2):
        e = Ereg(0, qt)
        if PK_ADD:
            p1.append(I('v_pk_add_f32 v[%d:%d], v[%d:%d], v[%d:%d]' % (vPA[qt], vPA[qt] + 1, e, e + 1, e + 2, e + 3)))
        else:
            p1.append(I('v_add_f32 v%d, v%d, v%d' % (vTS[qt], e, e + 1)))
            p2.append(I('v_add_f32 v%d, v%d, v%d' % (vTS[qt], vTS[qt], e + 2)))
            p2.append(I('v_add_f32 v%d, v%d, v%d' % (vTS[qt], vTS[qt], e + 3)))
    pk0 = []
    for qt in range(2):
        e = Ereg(0, qt)
        pk0.append(I('v_cvt_pk_bf16_f32 v%d, v%d, v%d' % (Preg(sb, qt), e, e + 1)))
        pk0.append(I('v_cvt_pk_bf16_f32 v%d, v%d, v%d' % (Preg(sb, qt) + 1, e + 2, e + 3)))
    p1 += pk0
    ex = []
    for qt in range(2):
        for i in range(4): ex.append(I('v_exp_f32 v%d, v%d' % (Ereg(1, qt) + i, Sacc(sb, 1, qt) + i)))
    adds0 = p2; p2 = []
    while ex or adds0:
        if ex: p2.append(ex.pop(0))
        if ex: p2.append(ex.pop(0))
        if adds0: p2.append(adds0.pop(0))
    for qt in range(2):
        e = Ereg(1, qt)
        if PK_ADD:
            p2.append(I('v_pk_add_f32 v[%d:%d], v[%d:%d], v[%d:%d]' % (vPA[qt], vPA[qt] + 1, vPA[qt], vPA[qt] + 1, e, e + 1)))
            p2.append(I('v_pk_add_f32 v[%d:%d], v[%d:%d], v[%d:%d]' % (vPA[qt], vPA[qt] + 1, vPA[qt], vPA[qt] + 1, e + 2, e + 3)))
            p2.append(I('v_add_f32 v%d, v%d, v%d' % (vTS[qt], vPA[qt], vPA[qt] + 1)))
        else:
            for i in range(4): p2.append(I('v_add_f32 v%d, v%d, v%d' % (vTS[qt], vTS[qt], e + i)))
        p2.append(I('v_cvt_pk_bf16_f32 v%d, v%d, v%d' % (Preg(sb, qt) + 2, e, e + 1)))
        p2.append(I('v_cvt_pk_bf16_f32 v%d, v%d, v%d' % (Preg(sb, qt) + 3, e + 2, e + 3)))
    p2.append(I('v_max_f32 v%d, v%d, v%d' % (vT[0], vTS[0], vTS[1])))
    p2.append(I('v_cmp_lt_f32 vcc, s%d, v%d' % (sTHR, vT[0])))
    return p1, p2

def l_update():
    return [I('v_add_f32 v%d, v%d, v%d' % (vL[qt], vL[qt], vTS[qt])) for qt in range(2)]

def mask_block(p, sb, label, back, nop):
    p(label + ':')
    if nop: p('s_nop 7')
    p('s_cmp_eq_u32 s%d, 0' % sMK)
    p('s_cbranch_scc1 %s_d' % label)
    for kt in range(2):
        for qt in range(2):
            r = Sacc(sb, kt, qt)
            for i in range(4): p('v_mov_b32 v%d, v%d' % (r + i, vNINF))
    p('s_branch %s' % back)
    p(label + '_d:')
    for i in range(4):
        for t in range(2):
            r = Sacc(sb, t, t) + i
            p('v_cndmask_b32 v%d, v%d, v%d, s[%d:%d]' % (r, r, vNINF, sDIAG + 2 * i, sDIAG + 2 * i + 1))
        p('v_mov_b32 v%d, v%d' % (Sacc(sb, 1, 0) + i, vNINF))
    p('s_branch %s' % back)

def allreduce(p, op, regs, tmp):
    for r, t in zip(regs, tmp): p('v_mov_b32 v%d, v%d' % (t, r))
    p('s_nop 1')
    for r, t in zip(regs, tmp): p('v_permlane32_swap_b32 v%d, v%d' % (r, t))
    p('s_nop 1')
    for r, t in zip(regs, tmp): p('%s v%d, v%d, v%d' % (op, r, r, t))
    for r, t in zip(regs, tmp): p('v_mov_b32 v%d, v%d' % (t, r))
    p('s_nop 1')
    for r, t in zip(regs, tmp): p('v_permlane16_swap_b32 v%d, v%d' % (r, t))
    p('s_nop 1')
    for r, t in zip(regs, tmp): p('%s v%d, v%d, v%d' % (op, r, r, t))

def slow_path(p, sb, label):
    ob = 1 - sb
    p(label + ':')
    p('s_nop 7')
    d = [vT[2], vT[3]]
    for qt in range(2):
        a, b = Sacc(sb, 0, qt), Sacc(sb, 1, qt)
        p('v_max3_f32 v%d, v%d, v%d, v%d' % (d[qt], a, a + 1, a + 2))
        p('v_max3_f32 v%d, v%d, v%d, v%d' % (d[qt], d[qt], a + 3, b))
        p('v_max3_f32 v%d, v%d, v%d, v%d' % (d[qt], d[qt], b + 1, b + 2))
        p('v_max_f32 v%d, v%d, v%d' % (d[qt], d[qt], b + 3))
    allreduce(p, 'v_max_f32', d, [vT[4], vT[5]])
    for qt in range(2): p('v_max_f32 v%d, s%d, v%d' % (d[qt], sCLAMP, d[qt]))
    f = [vT[4], vT[5]]
    for qt in range(2):
        p('v_add_f32 v%d, v%d, v%d' % (vM[qt], vM[qt], d[qt]))
        p('v_sub_f32 v%d, 0, v%d' % (f[qt], d[qt]))
        p('v_min_f32 v%d, 0, v%d' % (f[qt], f[qt]))
    for qt in range(2): p('v_exp_f32 v%d, v%d' % (f[qt], f[qt]))
    for qt in range(2):
        for i in range(4): p('v_sub_f32 v%d, 0, v%d' % (NEGM + 4 * qt + i, vM[qt]))
    for qt in range(2): p('v_mul_f32 v%d, v%d, v%d' % (vL[qt], vL[qt], f[qt]))
    for buf in (sb, ob):
        for kt in range(2):
            for qt in range(2):
                for i in range(4):
                    r = Sacc(buf, kt, qt) + i
                    p('v_sub_f32 v%d, v%d, v%d' % (r, r, d[qt]))
    p1, p2 = softmax_parts(sb)
    if sb == 0:
        p('s_cmp_eq_u32 s%d, 1' % sT3)
        p('s_cbranch_scc0 %s_full' % label)
        p([I(x.t) for x in p1])
        p('s_branch L_k2_pro_back')
        p(label + '_full:')
    for dt in range(16):
        for qt in range(2):
            for i in range(4):
                r = Oacc(dt, qt) + i
                p('v_mul_f32 v%d, v%d, v%d' % (r, r, f[qt]))
    p(p1); p('s_nop 0'); p(p2[:-2])
    p('s_cmp_eq_u32 s%d, 1' % sINM)
    p('s_cbranch_scc1 %s_back' % label.replace('L_k2_', 'L_k2m_'))
    p('s_branch %s_back' % label)

def stamp_ops():
    return [I('v_mov_b32 v%d, s92' % vDUM), I('buffer_store_dword v%d, off, s[%d:%d], s94' % (vDUM, SWS, SWS + 3)), I('s_add_u32 s94, s94, 4'), I('s_memtime s[92:93]')]

PRE = 3
class Eng:
    def __init__(self): self.sigma = 0; self.uid = 0
    def reads(self, buf, slot, sg):
        kp, u = divmod(slot, 4)
        va = (vVA, vVB, vVC)[buf]
        res = []
        for hf in range(2):
            s = 2 * kp + hf
            b = WR + 8 * (sg % 4) + 4 * hf
            for j in range(2):
                self.uid += 1
                res.append(I('ds_read_b64_tr_b16 a[%d:%d], v%d offset:%d' % (b + 2 * j, b + 2 * j + 1, va[u], s * 4096 + 2048 * j), tag=('w', self.uid)))
        return res

ACC, PK = 128, 160
def acc(u, t): return ACC + 8 * u + 4 * t
def bfrag(s, t): return vr(16 * s + 4 * t) if s < 8 else ar(HF + 8 * (s - 8) + 4 * t)

def proj_dma(g):
    base = (g % 3) * PBUF
    r = [I('s_add_u32 s%d, s%d, %d' % (sT0, sSOA, g * 128)), I('s_add_u32 s%d, s%d, %d' % (sT1, sSOB, g * 128))]
    for i in range(8):
        if i % 4 == 0: r.append(I('s_add_u32 m0, s%d, %d' % (sM0W, base + (i // 4) * 4096)))
        r.append(I('buffer_load_dwordx4 v%d, s[%d:%d], s%d offen offset:%d lds' % (vDO[i], SWO, SWO + 3, sT0, (i % 4) * 1024), tag=('pd', g, i)))
    r.append(I('s_add_u32 m0, s%d, %d' % (sM0, base + 32768)))
    for i in range(4):
        r.append(I('buffer_load_dwordx4 v%d, s[%d:%d], s%d offen offset:%d lds' % (vDO[8 + i], SWD, SWD + 3, sT1, i * 1024), tag=('pd', g, 8 + i)))
    return r

def proj_segment(eng, g, pre_tags, streams, pending, wtags, issued):
    S_ = 24; sg0 = eng.sigma; buf = g % 3
    mf = []; rdS = Stream('wreads', prio=5, pace=1)
    tags = {i: pre_tags[i] for i in range(PRE)}
    for slot in range(S_):
        if slot + PRE < S_:
            r = eng.reads(buf, slot + PRE, sg0 + slot + PRE)
            tags[slot + PRE] = [x.tag for x in r]
            for q, x in enumerate(r): rdS.add(x, e=4 * slot - 1, d=4 * slot + q)
    for slot in range(S_):
        kp, u = divmod(slot, 4)
        for t in range(2):
            for hf in range(2):
                s = 2 * kp + hf
                b = WR + 8 * ((sg0 + slot) % 4) + 4 * hf
                d = vr(acc(u, t))
                need = ()
                if t == 0 and hf == 0:
                    need = list(tags[slot])
                    if slot % 2 == 0 and slot + 1 < S_ and slot + 1 >= PRE: need += tags[slot + 1]
                dd = vr(PK + 8 * u + 4 * t) if s == 11 else d
                mf.append(I(mfma(dd, ar(b), bfrag(s, t), '0' if s == 0 else d), need=need))
    n = len(mf)
    bar_gap = 4 * (S_ - PRE) + 3
    bs = Stream('bar', prio=9)
    nxt = []
    if g < 6:
        bs.add(I('s_waitcnt lgkmcnt(0)', vneed=wtags), e=bar_gap, d=bar_gap)
        bs.add(I('s_barrier'), e=bar_gap, d=bar_gap)
        if STAMP:
            for x in stamp_ops(): bs.add(x, e=bar_gap, d=bar_gap)
        k = 0
        for ps in range(PRE):
            r = eng.reads((g + 1) % 3, ps, sg0 + S_ + ps)
            nxt.append([x.tag for x in r])
            for q, x in enumerate(r):
                e = bar_gap + 1 + k // 2 if ps < 2 else 4 * (S_ - 1) + q - 1
                k += 1
                e = min(max(e, bar_gap + 1), n - 1)
                bs.add(x, e=e, d=e)
    eng.sigma = sg0 + S_
    seq = pack(mf, [rdS, bs] + streams, budget=8)
    seq = insert_vm_waits(seq, issued)
    seq, pend = insert_lgkm_waits(seq, pending)
    return seq, nxt, pend

def proj_epilogue():
    ops = []; last = -1
    for p_ in range(2):
        for t in range(2):
            dst = PK + 8 * (2 * p_) + 4 * t
            for half in range(2):
                u = 2 * p_ + half; a0 = PK + 8 * u + 4 * t
                last = max(last, 4 * u + 2 * t + 1 - 16 + 6)
                ops.append((last, I('v_cvt_pk_bf16_f32 v%d, v%d, v%d' % (dst + 2 * half, a0, a0 + 1))))
                ops.append((last, I('v_cvt_pk_bf16_f32 v%d, v%d, v%d' % (dst + 2 * half + 1, a0 + 2, a0 + 3))))
            ops.append((last, I('buffer_store_dwordx4 %s, v%d, s[%d:%d], s%d offen%s' % (vr(dst), vST[2 * p_ + t], SWS, SWS + 3, sOUT, ST_FLAGS))))
    return ops

def spread(name, ins, lo, hi, dl, prio=3):
    s = Stream(name, prio=prio)
    for i, x in enumerate(ins): s.add(x, e=int(lo + (hi - lo) * i / len(ins)), d=dl)
    return s

def lpiece(i):
    r = [I('s_add_u32 m0, s%d, %d' % (sM0L, i * 16384))]
    for k in range(4 if 'nodma' not in ABL else 0):
        r.append(I('buffer_load_dwordx4 v%d, s[%d:%d], s%d offen offset:%d lds' % (vDP[i], SWS, SWS + 3, sT2, k * 1024)))
    return r

def half_iter(par, ka_in, ka_out, checked):
    sb_next = 1 - par
    kprev = vPRV if par == 0 else vCUR
    koff = 32768 if par == 0 else 0
    kb_reads = [rd(ar(KB_ + 4 * s), kprev, koff + (8 + s) * 1024) for s in range(8)]
    mfA = qk_mfmas(sb_next, [x.tag for x in ka_in], [x.tag for x in kb_reads])
    sK = Stream('kb', prio=6)
    for s, x in enumerate(kb_reads): sK.add(x, e=s, d=s + 3)
    p1_next, _ = softmax_parts(sb_next)
    _, p2 = softmax_parts(par)
    sS = Stream('soft', prio=4)
    if 'nosoft' in ABL: p2 = p2[-2:]; p1_next = []
    for i, x in enumerate(p2): sS.add(x, e=-1 + i // 3, d=30)
    voff = 16384 if par == 0 else 49152
    v_reads = [rd(ar(VR + 4 * (dt % 8)), vCUR, voff + dt * 1024) for dt in range(16)]
    sV = Stream('vpre', prio=7)
    if par == 0:
        sV.add(I('s_waitcnt vmcnt(0) lgkmcnt(0)'), e=20, d=20)
        if 'nobar' not in ABL: sV.add(I('s_barrier'), e=20, d=20)
        if STAMP:
            for x in stamp_ops(): sV.add(x, e=20, d=20)
        if checked: sV.add(GL('s_cmp_eq_u32 s%d, s%d' % (sCNT, sEVT), 's_cbranch_scc1 L_k2_evt', 'L_k2_evt_back:'), e=21, d=21)
    for dt in range(6): sV.add(v_reads[dt], e=22 + dt, d=min(30, 24 + dt))
    streamsA = [sK, sS, sV]
    mfB = pv_mfmas(par, [x.tag for x in v_reads])
    sV2 = Stream('v', prio=7)
    for dt in range(6, 16):
        e = -1 + (dt - 6) if dt < 8 else 2 * (dt - 8) + 1
        sV2.add(v_reads[dt], e=e, d=e + 2)
    sKa = Stream('ka', prio=5)
    for s, x in enumerate(ka_out): sKa.add(x, e=13 + 2 * s, d=15 + 2 * s)
    sM = Stream('mask', prio=8)
    lab = 'L_k2_mask%d' % sb_next
    for x in l_update(): sM.add(x, e=0, d=2)
    if checked:
        sM.add(I('s_sub_i32 s%d, s%d, 1' % (sMK, sMK)), e=1, d=3)
        sM.add(GL('s_cmp_le_i32 s%d, 0' % sMK, 's_cbranch_scc1 %s' % lab, lab + '_back:'), e=3, d=3)
    for i, x in enumerate(p1_next): sM.add(x, e=4 + i, d=31)
    return mfA, streamsA, mfB, [sV2, sKa, sM]

def pk_sel(qt):
    return 'op_sel_hi:[1,0]' if qt == 0 else 'op_sel:[0,1] op_sel_hi:[1,1]'

def finalize_plain(p, scp, after=None):
    for s in range(8):
        for qt in range(2):
            a, b = Oacc(2 * s, qt), Oacc(2 * s + 1, qt)
            for r in (a, a + 2, b, b + 2):
                p('v_pk_mul_f32 v[%d:%d], v[%d:%d], v[%d:%d] %s' % (r, r + 1, r, r + 1, scp, scp + 1, pk_sel(qt)))
            p('v_cvt_pk_bf16_f32 v%d, v%d, v%d' % (a, a, a + 1))
            p('v_cvt_pk_bf16_f32 v%d, v%d, v%d' % (a + 1, a + 2, a + 3))
            p('v_cvt_pk_bf16_f32 v%d, v%d, v%d' % (a + 2, b, b + 1))
            p('v_cvt_pk_bf16_f32 v%d, v%d, v%d' % (a + 3, b + 2, b + 3))
            if after: after(s, qt)

def feeder(p, items, n):
    st = {'i': 0, 'k': 0}
    def f(*_):
        st['k'] += 1
        upto = len(items) * st['k'] // n
        while st['i'] < upto:
            p(items[st['i']]); st['i'] += 1
    return f

def build():
    p = Prog()
    p('%s:' % NAME)
    p('s_cmp_ge_u32 s2, 256')
    p('s_cbranch_scc1 L_k2_end')
    p('s_load_dwordx16 s[%d:%d], s[0:1], 0' % (sKPTR, sKPTR + 15))
    p('s_load_dwordx8 s[%d:%d], s[0:1], 64' % (sKPTR + 16, sKPTR + 23))
    p('s_load_dwordx4 s[%d:%d], s[0:1], 96' % (sKPTR + 24, sKPTR + 27))
    p('s_getpc_b64 s[92:93]')
    p('s_mov_b32 s94, 0xc000')
    p('s_mov_b32 s95, 0x20000')
    p('s_lshr_b32 s3, s2, 3')
    p('s_lshl_b32 s3, s3, 11')
    p('v_lshlrev_b32 v3, 7, v0')
    p('v_mov_b32 v4, 0x7ff00000')
    p('v_cmp_gt_u32 vcc, 16, v0')
    p('s_nop 1')
    p('v_cndmask_b32 v3, v4, v3, vcc')
    p('buffer_load_dword v%d, v3, s[92:95], s3 offen' % vDUM)
    p('v_lshrrev_b32 v3, 6, v0')
    p('v_and_b32 v%d, 63, v0' % vLANE)
    p('v_readfirstlane_b32 s%d, v3' % sW)
    p('s_and_b32 s3, s2, 7')
    p('s_lshr_b32 s%d, s2, 3' % sT0)
    p('s_and_b32 s%d, s%d, 1' % (sT1, sT0))
    p('s_lshl_b32 s3, s3, 1')
    p('s_add_u32 s%d, s3, s%d' % (sH, sT1))
    p('s_lshr_b32 s%d, s%d, 1' % (sT0, sT0))
    p('s_lshr_b32 s%d, s%d, 3' % (sROLE, sT0))
    p('s_and_b32 s%d, s%d, 7' % (sJ, sT0))
    p('s_mov_b32 s%d, s%d' % (sSLOT, sT0))
    p('v_lshlrev_b32 v%d, 4, v%d' % (vL16, vLANE))
    p('s_lshl_b32 s%d, s%d, 12' % (sM0, sW))
    p('v_add_u32 v%d, s%d, v%d' % (vDK, sM0, vL16))
    p('s_lshl_b32 s%d, s%d, 13' % (sM0W, sW))
    p('s_lshl_b32 s%d, s%d, 21' % (sKVB, sH))
    p('v_and_b32 v%d, 15, v%d' % (vT[0], vLANE))
    p('v_lshrrev_b32 v%d, 4, v%d' % (vT[1], vLANE))
    p('v_lshlrev_b32 v%d, 2, v%d' % (vT[2], vT[1]))
    p('v_sub_u32 v%d, v%d, v%d' % (vRG, vT[0], vT[2]))
    p('v_mov_b32 v%d, 0xff800000' % vNINF)
    p('s_mov_b32 s%d, %s' % (sTHR, hexf(2.0 ** 20)))
    def g_loads(rb):
        p('v_and_b32 v%d, 15, v%d' % (vT[1], vLANE))
        p('v_lshlrev_b32 v%d, 2, v%d' % (vT[1], vT[1]))
        p('s_lshl_b32 s%d, s%d, 7' % (sT0, rb))
        p('s_add_u32 s%d, s%d, 0x%x' % (sT0, sT0, WS_G))
        for qt in range(2): p('buffer_load_dword v%d, v%d, s[%d:%d], s%d offen offset:%d' % (vG[qt], vT[1], SWS, SWS + 3, sT0, 64 * qt))
    def h_items(rb):
        r = [I('s_lshl_b32 s%d, s%d, 4' % (sSO, rb)), I('s_add_u32 s%d, s%d, s%d' % (sSO, sSO, sH)), I('s_lshl_b32 s%d, s%d, 13' % (sSO, sSO)),
             I('s_add_u32 s%d, s%d, 0x%x' % (sSO, sSO, WS_H))]
        for q4 in range(2):
            for i in range(4):
                r.append(I('buffer_load_dwordx4 %s, v%d, s[%d:%d], s%d offen offset:%d' % (ar(HF + 16 * q4 + 4 * i), vL16, SWS, SWS + 3, sSO, i * 1024)))
            if q4 < 1: r.append(I('s_add_u32 s%d, s%d, 4096' % (sSO, sSO)))
        return r
    def q_items(rb, so):
        r = [I('s_lshl_b32 s%d, s%d, 6' % (so, sH)), I('s_add_u32 s%d, s%d, s%d' % (so, so, rb)), I('s_lshl_b32 s%d, s%d, 14' % (so, so)),
             I('s_add_u32 s%d, s%d, 0x%x' % (so, so, WS_Q))]
        for q4 in range(4):
            for i in range(4):
                r.append(I('buffer_load_dwordx4 %s, v%d, s[%d:%d], s%d offen offset:%d' % (ar(QF + 16 * q4 + 4 * i), vL16, SWS, SWS + 3, so, i * 1024)))
            if q4 < 3: r.append(I('s_add_u32 s%d, s%d, 4096' % (so, so)))
        return r
    def seg_state(zero_o=True):
        if zero_o:
            for r in range(0, 128, 2): p('v_mov_b64 v[%d:%d], 0' % (O0 + r, O0 + r + 1))
        for r in range(0, 8, 2): p('v_mov_b64 v[%d:%d], 0' % (NEGM + r, NEGM + r + 1))
        for qt in range(2):
            p('v_mov_b32 v%d, 0' % vL[qt]); p('v_mov_b32 v%d, 0' % vM[qt])
        p('v_add_u32 v%d, 0x%x, v%d' % (vPRV, EXTRA - 16384, vL16))
    p('s_sub_u32 s%d, 15, s%d' % (sB, sJ))
    p('s_lshl_b32 s%d, s%d, 2' % (sT0, sJ))
    p('s_sub_u32 s%d, %d, s%d' % (sT0, 64 - SPLIT, sT0))
    p('s_cmp_eq_u32 s%d, 0' % sROLE)
    p('s_cselect_b32 s%d, %d, 0' % (sKB0, SPLIT))
    p('s_cselect_b32 s%d, s%d, %d' % (sN, sT0, SPLIT))
    p('s_cselect_b32 s%d, 0xffff, 3' % sEVT)
    p('s_cselect_b32 s%d, s%d, 0x10000000' % (sLAST, sKVB))
    p('s_mov_b32 s%d, 0' % sPHASE)
    p('s_mov_b32 s%d, 0' % sPUBP)
    assert SPLIT == 36
    p('s_cmp_eq_u32 s%d, 7' % sJ)
    p('s_cbranch_scc0 L_k2_split')
    p('s_add_u32 s%d, s%d, 7' % (sB, sROLE))
    p('s_add_u32 s%d, s%d, 1' % (sN, sB))
    p('s_lshl_b32 s%d, s%d, 2' % (sN, sN))
    p('s_mov_b32 s%d, 0' % sKB0)
    p('s_mov_b32 s%d, 0' % sROLE)
    p('s_mov_b32 s%d, 1' % sPHASE)
    p('s_mov_b32 s%d, 3' % sEVT)
    p('s_mov_b32 s%d, 0x10000000' % sLAST)
    p('L_k2_split:')
    p('s_lshl_b32 s%d, s%d, 2' % (sRB, sB))
    p('s_add_u32 s%d, s%d, s%d' % (sRB, sRB, sW))
    p('s_sub_u32 s%d, s%d, s%d' % (sMK, sRB, sKB0))
    p('s_lshl_b32 s%d, s%d, 15' % (sKB, sKB0))
    p('s_add_u32 s%d, s%d, s%d' % (sKB, sKB, sKVB))
    p('s_lshr_b32 s%d, s%d, 1' % (sCNT, sN))
    for i, off in enumerate((65536, 16384, 98304, 49152)): p('v_add_u32 v%d, 0x%x, v%d' % (vDP[i], off, vDK))
    p('s_waitcnt lgkmcnt(0)')
    kp = lambda n: sKPTR + KA[n] // 4
    srd(p, SWS, kp('ws'), SZ['ws'])
    if STAMP:
        p('s_lshl_b32 s94, s2, 2')
        p('s_add_u32 s94, s94, s%d' % sW)
        p('s_lshl_b32 s94, s94, 8')
        p('s_add_u32 s94, s94, 0x%x' % WS_DBG)
        p('s_memrealtime s[92:93]')
        p('s_waitcnt lgkmcnt(0)')
        p(stamp_ops())
        p('s_waitcnt lgkmcnt(0)')
    p(piece(EXTRA, sKB, 0))
    p(q_items(sRB, sT0))
    p('s_mov_b32 s%d, s%d' % (sT1, sRB))
    p('s_add_u32 s%d, s%d, s%d' % (sT2, sROLE, sPHASE))
    p('s_cmp_lg_u32 s%d, 0' % sT2)
    p('s_cbranch_scc1 L_k2_g0')
    p('s_lshl_b32 s%d, s%d, 2' % (sT1, sJ))
    p('s_add_u32 s%d, s%d, s%d' % (sT1, sT1, sW))
    p('L_k2_g0:')
    g_loads(sT1)
    p('v_mov_b32 v%d, v%d' % (vCUR, vL16))
    srd(p, SWO, kp('wo'), SZ['wo']); srd(p, SWD, kp('wd'), SZ['wd'])
    p('v_lshrrev_b32 v%d, 4, v%d' % (vT[1], vLANE))
    p('v_bfe_u32 v%d, v%d, 2, 2' % (vT[2], vLANE))
    p('v_and_b32 v%d, 3, v%d' % (vT[3], vLANE))
    p('v_lshl_add_u32 v%d, v%d, 2, v%d' % (vT[4], vT[1], vT[2]))
    p('v_bfe_u32 v%d, v%d, 1, 2' % (vT[5], vT[4]))
    p('v_bfe_u32 v%d, v%d, 3, 1' % (vT[0], vT[4]))
    p('v_lshlrev_b32 v%d, 1, v%d' % (vT[0], vT[0]))
    p('v_xor_b32 v%d, v%d, v%d' % (vT[5], vT[5], vT[0]))
    p('v_lshlrev_b32 v%d, 7, v%d' % (vT[4], vT[4]))
    p('v_lshl_add_u32 v%d, v%d, 3, v%d' % (vT[4], vT[3], vT[4]))
    for v in range(4):
        p('v_xor_b32 v%d, %d, v%d' % (vT[0], v, vT[5]))
        p('v_lshl_add_u32 v%d, v%d, 5, v%d' % (vVA[v], vT[0], vT[4]))
        p('v_add_u32 v%d, %d, v%d' % (vVB[v], PBUF, vVA[v]))
    p('v_lshrrev_b32 v%d, 3, v%d' % (vT[0], vLANE))
    p('v_mul_u32_u24 v%d, 896, v%d' % (vT[1], vT[0]))
    p('v_bfe_u32 v%d, v%d, 4, 2' % (vT[2], vLANE))
    p('v_bfe_u32 v%d, v%d, 1, 2' % (vT[3], vLANE))
    p('v_xor_b32 v%d, v%d, v%d' % (vT[2], vT[2], vT[3]))
    p('v_and_b32 v%d, 1, v%d' % (vT[3], vLANE))
    p('v_lshl_add_u32 v%d, v%d, 4, v%d' % (vT[1], vT[3], vT[1]))
    p('v_lshl_add_u32 v%d, v%d, 5, v%d' % (vT[4], vT[2], vT[1]))
    p('v_xor_b32 v%d, 2, v%d' % (vT[2], vT[2]))
    p('v_lshl_add_u32 v%d, v%d, 5, v%d' % (vT[5], vT[2], vT[1]))
    p('s_mul_i32 s%d, s%d, %d' % (sT0, sW, 64 * 896))
    p('s_mul_i32 s%d, s%d, %d' % (sT1, sW, 32 * 896))
    for i in range(8):
        p('v_add_u32 v%d, 0x%x, v%d' % (vDO[i], 8 * i * 896 - (i % 4) * 1024, vT[4 + i % 2]))
        p('v_add_u32 v%d, s%d, v%d' % (vDO[i], sT0, vDO[i]))
    for i in range(4):
        p('v_add_u32 v%d, 0x%x, v%d' % (vDO[8 + i], 8 * i * 896 - i * 1024, vT[4 + i % 2]))
        p('v_add_u32 v%d, s%d, v%d' % (vDO[8 + i], sT1, vDO[8 + i]))
    for i in range(4): p('v_add_u32 v%d, 0x%x, v%d' % (vST[i], (i // 2) * 32768 + (i % 2) * 16384, vL16))
    for i in range(4): p('v_cmp_gt_i32 s[%d:%d], %d, v%d' % (sDIAG + 2 * i, sDIAG + 2 * i + 1, i, vRG))
    p('s_lshl_b32 s%d, s%d, 3' % (sT0, sH))
    p('s_add_u32 s%d, s%d, s%d' % (sT0, sT0, sJ))
    p('s_lshl_b32 s%d, s%d, 7' % (sFL, sT0))
    p('s_add_u32 s%d, s%d, 0x%x' % (sFL, sFL, WS_FL))
    p('s_lshl_b32 s%d, s%d, 2' % (sT0, sT0))
    p('s_add_u32 s%d, s%d, s%d' % (sT0, sT0, sW))
    p('s_mul_i32 s%d, s%d, %d' % (sPM, sT0, 17 * 1024))
    p('s_add_u32 s%d, s%d, 0x%x' % (sPM, sPM, WS_PM))
    p('s_lshl_b32 s%d, s%d, 2' % (sT0, sSLOT))
    p('s_add_u32 s%d, s%d, s%d' % (sT0, sT0, sW))
    p('s_mul_i32 s%d, s%d, %d' % (sT1, sT0, 28 * 128))
    p('v_lshlrev_b32 v%d, 7, v%d' % (vT[0], vLANE))
    p('v_mov_b32 v%d, 0x7ff00000' % vT[1])
    p('v_cmp_gt_u32 vcc, 28, v%d' % vLANE)
    p('v_add_u32 v%d, s%d, v%d' % (vT[2], sT1, vT[0]))
    p('s_mul_i32 s%d, s%d, %d' % (sT1, sT0, 14 * 128))
    p('v_cndmask_b32 v%d, v%d, v%d, vcc' % (vPFO, vT[1], vT[2]))
    p('v_cmp_gt_u32 vcc, 14, v%d' % vLANE)
    p('v_add_u32 v%d, s%d, v%d' % (vT[2], sT1, vT[0]))
    p('s_nop 0')
    p('v_cndmask_b32 v%d, v%d, v%d, vcc' % (vPFD, vT[1], vT[2]))
    seg_state()
    p('s_waitcnt vmcnt(0)')
    p('s_barrier')
    p('v_add_u32 v%d, 0x%x, v%d' % (vT[0], EXTRA, vL16))
    p([rd(ar(KA_ + 4 * s), vT[0], s * 1024) for s in range(8)])
    p([rd(ar(KB_ + 4 * s), vT[0], (8 + s) * 1024) for s in range(8)])
    p('s_mov_b32 s%d, s%d' % (sM0L, sM0))
    p('s_mov_b32 s%d, s%d' % (sT2, sKB))
    rest = piece(EXTRA + 16384, sKB, 32768)
    for i in (1, 0, 3, 2): rest += lpiece(i)
    qk0 = [I(x.t) for x in qk_mfmas(0, None, None)]
    p('s_waitcnt lgkmcnt(8)')
    k_ = 0
    for i, m_ in enumerate(qk0):
        if i == 16: p('s_waitcnt lgkmcnt(0)')
        p(m_)
        for _ in range(1 if i < 26 else 0):
            if k_ < len(rest): p(rest[k_]); k_ += 1
            while k_ < len(rest) and rest[k_ - 1].k == 'salu' and rest[k_].k == 'salu': p(rest[k_]); k_ += 1
    p(rest[k_:])
    p('s_add_u32 s%d, s%d, 0x10000' % (sM0L, sM0))
    p('s_waitcnt vmcnt(16)')
    p('s_barrier')
    p([rd(ar(KA_ + 4 * s), vT[0], 16384 + s * 1024) for s in range(8)])
    p('s_branch L_k2_pm')
    p('L_k2_pc:')
    p('v_add_u32 v%d, 0x%x, v%d' % (vT[0], EXTRA, vL16))
    p([rd(ar(KA_ + 4 * s), vT[0], s * 1024) for s in range(8)])
    p([rd(ar(KB_ + 4 * s), vT[0], (8 + s) * 1024) for s in range(8)])
    p('s_waitcnt lgkmcnt(8)')
    p([I(x.t) for x in qk0[:16]])
    p('s_waitcnt lgkmcnt(0)')
    p([rd(ar(KA_ + 4 * s), vT[0], 16384 + s * 1024) for s in range(8)])
    p([I(x.t) for x in qk0[16:]])
    p('L_k2_pm:')
    p('s_cmp_le_i32 s%d, 0' % sMK)
    p('s_cbranch_scc1 L_k2_maskp')
    p('L_k2_maskp_back:')
    p('s_mov_b32 s%d, %s' % (sCLAMP, hexf(-1e30)))
    p('s_mov_b32 s%d, 1' % sT3)
    p('s_branch L_k2_slow0')
    p('L_k2_pro_back:')
    p('s_mov_b32 s%d, 0' % sCLAMP)
    p('s_mov_b32 s%d, 0' % sT3)
    p('s_waitcnt lgkmcnt(0)')
    if STAMP: p(stamp_ops())
    def gen_body(checked):
        pre = 'L_k2' if checked else 'L_k2m'
        ka0 = [rd(ar(KA_ + 4 * s), vCUR, s * 1024) for s in range(8)]
        ka1 = [rd(ar(KA_ + 4 * s), vCUR, 32768 + s * 1024) for s in range(8)]
        mfA0, stA0, mfB0, stB0 = half_iter(0, ka1, ka0, checked)
        mfA1, stA1, mfB1, stB1 = half_iter(1, ka0, ka1, checked)
        dA0 = Stream('dma', prio=3); dB = Stream('dma', prio=3); dA = Stream('dma', prio=3); dB1 = Stream('dma', prio=3)
        if checked:
            for x in [I('s_add_u32 s%d, s%d, 65536' % (sKB, sKB)), GL('s_cmp_eq_u32 s%d, 1' % sCNT, 's_cselect_b32 s%d, s%d, s%d' % (sT2, sLAST, sKB))]:
                dB.add(x, e=4, d=8)
            start, step = 36, ATT_STEP
        else:
            dA0.add(I('s_add_u32 s%d, s%d, 65536' % (sKB, sKB)), e=8, d=18)
            dA0.add(I('s_mov_b32 s%d, s%d' % (sT2, sKB)), e=8, d=18)
            start, step = ATT_START, ATT_STEP
        for pc in range(4):
            for k, x in enumerate(lpiece(pc)):
                gg = start + int(step * (4 * pc + max(k - 1, 0))) - (1 if k == 0 else 0)
                ph, off = divmod(gg, 32)
                (dA0, dB, dA, dB1)[ph].add(x, e=off, d=min(31, off + 3))
        ctl = Stream('ctl', prio=2)
        c_ = [I('s_xor_b32 s%d, s%d, 0x10000' % (sM0L, sM0L)), I('s_sub_u32 s%d, s%d, 1' % (sCNT, sCNT))]
        if not checked: c_.append(I('s_sub_i32 s%d, s%d, 2' % (sMK, sMK)))
        for x in c_: ctl.add(x, e=22, d=30)
        for x in [I('v_mov_b32 v%d, v%d' % (vPRV, vCUR)), I('v_xor_b32 v%d, 0x10000, v%d' % (vCUR, vCUR))]: ctl.add(x, e=30, d=31)
        body = []
        body += pack(mfA0, stA0 + [dA0], budget=8, last_reserve=True)
        body += [I('s_cbranch_vccnz L_k2_slow0'), I(pre + '_slow0_back:')]
        body += pack(mfB0, stB0 + [dB], budget=8, last_reserve=True)
        body += pack(mfA1, stA1 + [dA], budget=8, last_reserve=True)
        body += [I('s_cbranch_vccnz L_k2_slow1'), I(pre + '_slow1_back:')]
        body += pack(mfB1, stB1 + [dB1, ctl], budget=8, last_reserve=True)
        return body
    bodies = {c: gen_body(c) for c in (True, False)}
    tails = {}
    for c in bodies:
        _, pend = insert_lgkm_waits(bodies[c], [])
        txt = {x.tag: x.t for x in bodies[c] if x.k == 'ds'}
        tails[c] = [txt[t] for t in pend]
    seqs = {}
    for c in bodies:
        inv = {x.t: x.tag for x in bodies[c] if x.k == 'ds' and x.t in tails[True] + tails[False]}
        variants = []
        for o in bodies:
            pend = [inv[t] for t in tails[o]]
            variants.append(insert_lgkm_waits(bodies[c], pend)[0])
        a_, b_ = variants
        assert [x.t for x in a_ if x.k != 'wait'] == [x.t for x in b_ if x.k != 'wait']
        same = [x.t for x in a_] == [x.t for x in b_]
        assert same, 'loop bodies disagree on the entry state'
        seqs[c] = a_
    p('s_mov_b32 s%d, 0' % sINM)
    p('L_k2_loop:')
    p(seqs[True])
    p('s_cmp_eq_u32 s%d, 0' % sCNT)
    p('s_cbranch_scc1 L_k2_exit')
    p('s_cmp_le_u32 s%d, 3' % sCNT)
    p('s_cbranch_scc1 L_k2_loop')
    p('s_mov_b32 s%d, 1' % sINM)
    p('L_k2_main:')
    p(seqs[False])
    p('s_cmp_gt_u32 s%d, 3' % sCNT)
    p('s_cbranch_scc1 L_k2_main')
    p('s_mov_b32 s%d, 0' % sINM)
    p('s_branch L_k2_loop')
    p('L_k2_exit:')
    if STAMP: p(stamp_ops())
    allreduce(p, 'v_add_f32', vL, [vT[0], vT[1]])
    p('s_cmp_eq_u32 s%d, 1' % sROLE)
    p('s_cbranch_scc1 L_k2_fin')
    p('s_cmp_eq_u32 s%d, 1' % sPHASE)
    p('s_cbranch_scc1 L_k2_fin')
    p('s_waitcnt lgkmcnt(0)')
    for qt in range(2): p('v_rcp_f32 v%d, v%d' % (vT[1 + qt], vL[qt]))
    for qt in range(2): p('v_cmp_lt_f32 s[%d:%d], 0, v%d' % (sMSK + 2 * qt, sMSK + 2 * qt + 1, vL[qt]))
    p('s_nop 1')
    for qt in range(2): p('v_cndmask_b32 v%d, 0, v%d, s[%d:%d]' % (vT[1 + qt], vT[1 + qt], sMSK + 2 * qt, sMSK + 2 * qt + 1))
    st = vSTAT
    p('v_mov_b32 v%d, v%d' % (st, vM[0])); p('v_mov_b32 v%d, v%d' % (st + 1, vM[1]))
    p('v_mov_b32 v%d, v%d' % (st + 2, vL[0])); p('v_mov_b32 v%d, v%d' % (st + 3, vL[1]))
    p('s_lshl_b32 s%d, s%d, 2' % (sT1, sJ))
    p('s_add_u32 s%d, s%d, s%d' % (sT1, sT1, sW))
    nxt_loads = piece(EXTRA, sKVB, 0) + q_items(sT1, sT2) + piece(EXTRA + 16384, sKVB, 32768)
    finalize_plain(p, vT[1], after=feeder(p, nxt_loads, 16))
    p('s_add_u32 s%d, s%d, 16384' % (sT0, sPM))
    p('buffer_store_dwordx4 %s, v%d, s[%d:%d], s%d offen sc1' % (vr(st), vL16, SWS, SWS + 3, sT0))
    p('s_mov_b32 s%d, s%d' % (sT0, sPM))
    prev = []
    for s_ in range(8):
        for qt in range(2):
            k = 2 * s_ + qt
            p('buffer_store_dwordx4 %s, v%d, s[%d:%d], s%d offen offset:%d sc1' % (vr(16 * s_ + 4 * qt), vL16, SWS, SWS + 3, sT0, (k % 4) * 1024))
            if k % 4 == 3: p('s_add_u32 s%d, s%d, 4096' % (sT0, sT0))
            b = Oacc(2 * s_ + 1, qt)
            p('v_mov_b64 v[%d:%d], 0' % (b, b + 1)); p('v_mov_b64 v[%d:%d], 0' % (b + 2, b + 3))
            for a in prev: p('v_mov_b64 v[%d:%d], 0' % (a, a + 1)); p('v_mov_b64 v[%d:%d], 0' % (a + 2, a + 3))
            prev[:] = [Oacc(2 * s_, qt)]
    p('s_mov_b32 s%d, s%d' % (sB, sJ))
    p('s_mov_b32 s%d, 0' % sKB0)
    p('s_add_u32 s%d, s%d, 1' % (sN, sJ))
    p('s_lshl_b32 s%d, s%d, 2' % (sN, sN))
    p('s_mov_b32 s%d, 1' % sPHASE)
    p('s_mov_b32 s%d, 1' % sPUBP)
    p('s_lshl_b32 s%d, s%d, 2' % (sRB, sB))
    p('s_add_u32 s%d, s%d, s%d' % (sRB, sRB, sW))
    p('s_mov_b32 s%d, s%d' % (sMK, sRB))
    p('s_mov_b32 s%d, s%d' % (sKB, sKVB))
    p('s_lshr_b32 s%d, s%d, 1' % (sCNT, sN))
    p('s_mov_b32 s%d, s%d' % (sEVT, sCNT))
    p('s_mov_b32 s%d, 0x10000000' % sLAST)
    seg_state(zero_o=False)
    a = prev[0]
    p('v_mov_b64 v[%d:%d], 0' % (a, a + 1)); p('v_mov_b64 v[%d:%d], 0' % (a + 2, a + 3))
    p('s_waitcnt vmcnt(17) lgkmcnt(0)')
    p('s_barrier')
    p('s_branch L_k2_pc')
    p('L_k2_fin:')
    p('s_waitcnt vmcnt(0) lgkmcnt(0)')
    p('s_barrier')
    p('s_mul_i32 s%d, s%d, %d' % (sSOA, sH, 256 * 896))
    p('s_mul_i32 s%d, s%d, %d' % (sSOB, sH, 128 * 896))
    pd0 = proj_dma(0); pd1 = proj_dma(1)
    p('s_cmp_eq_u32 s%d, 1' % sROLE)
    p('s_cbranch_scc1 L_k2_merge')
    for qt in range(2): p('v_rcp_f32 v%d, v%d' % (vT[1 + qt], vL[qt]))
    p('s_nop 0')
    for qt in range(2): p('v_mul_f32 v%d, v%d, v%d' % (vT[1 + qt], vT[1 + qt], vG[qt]))
    finalize_plain(p, vT[1], after=feeder(p, h_items(sRB) + pd0 + pd1, 16))
    p('s_branch L_k2_proj')
    p('L_k2_merge:')
    mf_, w1, w2, lf = [vT[5], vT[6]], [vT[1], vT[2]], [vT[3], vT[4]], [vT[7], vT[8]]
    for qt in range(2):
        p('v_max_f32 v%d, v%d, v%d' % (mf_[qt], vM[qt], st + qt))
        p('v_sub_f32 v%d, v%d, v%d' % (w1[qt], vM[qt], mf_[qt]))
        p('v_sub_f32 v%d, v%d, v%d' % (w2[qt], st + qt, mf_[qt]))
    for qt in range(2):
        p('v_exp_f32 v%d, v%d' % (w1[qt], w1[qt])); p('v_exp_f32 v%d, v%d' % (w2[qt], w2[qt]))
    p('s_nop 0')
    for qt in range(2):
        p('v_mul_f32 v%d, v%d, v%d' % (w2[qt], w2[qt], st + 2 + qt))
        p('v_fma_f32 v%d, v%d, v%d, v%d' % (lf[qt], w1[qt], vL[qt], w2[qt]))
    for qt in range(2): p('v_rcp_f32 v%d, v%d' % (lf[qt], lf[qt]))
    p('s_nop 0')
    for qt in range(2):
        p('v_mul_f32 v%d, v%d, v%d' % (lf[qt], lf[qt], vG[qt]))
        p('v_mul_f32 v%d, v%d, v%d' % (w1[qt], w1[qt], lf[qt]))
        p('v_mul_f32 v%d, v%d, v%d' % (w2[qt], w2[qt], lf[qt]))
    feed = feeder(p, h_items(sRB) + [I(x.t) for x in pd0 + pd1], 16)
    for s in range(8):
        for qt in range(2):
            src, un = 128, 136
            for k in range(4): p('v_accvgpr_read_b32 v%d, a%d' % (src + k, PART + 4 * (2 * s + qt) + k))
            a, b = Oacc(2 * s, qt), Oacc(2 * s + 1, qt)
            prs = (a, a + 2, b, b + 2)
            for k in range(4):
                p('v_lshlrev_b32 v%d, 16, v%d' % (un + 2 * k, src + k))
                p('v_and_b32 v%d, 0xffff0000, v%d' % (un + 2 * k + 1, src + k))
            for k in range(4):
                p('v_pk_mul_f32 v[%d:%d], v[%d:%d], v[%d:%d] %s' % (prs[k], prs[k] + 1, prs[k], prs[k] + 1, w1[0], w1[0] + 1, pk_sel(qt)))
            for k in range(4):
                sel = 'op_sel_hi:[1,0,1]' if qt == 0 else 'op_sel:[0,1,0] op_sel_hi:[1,1,1]'
                p('v_pk_fma_f32 v[%d:%d], v[%d:%d], v[%d:%d], v[%d:%d] %s' % (prs[k], prs[k] + 1, un + 2 * k, un + 2 * k + 1, w2[0], w2[0] + 1, prs[k], prs[k] + 1, sel))
            p('v_cvt_pk_bf16_f32 v%d, v%d, v%d' % (a, a, a + 1))
            p('v_cvt_pk_bf16_f32 v%d, v%d, v%d' % (a + 1, a + 2, a + 3))
            p('v_cvt_pk_bf16_f32 v%d, v%d, v%d' % (a + 2, b, b + 1))
            p('v_cvt_pk_bf16_f32 v%d, v%d, v%d' % (a + 3, b + 2, b + 3))
            feed()
    p('L_k2_proj:')
    p('s_mul_i32 s%d, s%d, %d' % (sPO, sRB, 28 * 16384))
    p('s_lshl_b32 s%d, s%d, 10' % (sT0, sH))
    p('s_add_u32 s%d, s%d, s%d' % (sPO, sPO, sT0))
    p('s_add_u32 s%d, s%d, 0x%x' % (sPO, sPO, WS_PO))
    for v in range(4):
        p('v_add_u32 v%d, %d, v%d' % (vVC[v], 2 * PBUF, vVA[v]))
    p('s_waitcnt vmcnt(12)')
    p('s_barrier')
    if STAMP: p(stamp_ops())
    eng = Eng()
    pre = []
    for ps in range(PRE):
        r = eng.reads(0, ps, ps); pre.append([x.tag for x in r]); p(r)
    pend = [t for g_ in pre for t in g_]
    issued = [x.tag for x in pd1 if x.k == 'vmem']
    dmas = {1: pd1}
    cout = proj_epilogue()
    for g in range(7):
        streams = []
        if g + 2 <= 6:
            dmas[g + 2] = proj_dma(g + 2)
            ds_ = Stream('dma', prio=4)
            for i, x in enumerate(dmas[g + 2]): ds_.add(x, e=int(3.4 * i), d=int(3.4 * i) + 8)
            streams.append(ds_)
        if g >= 1:
            cin = Stream('carry', prio=2)
            cin.add(I('s_add_u32 s%d, s%d, %d' % (sOUT, sPO, (g - 1) * 65536)), e=-1, d=40)
            ep = proj_epilogue()
            for (e, x) in ep:
                if x.k != 'vmem': cin.add(x, e=e, d=56)
            for i, (e, x) in enumerate([y for y in ep if y[1].k == 'vmem']): cin.add(x, e=60 + 4 * i, d=76)
            streams.append(cin)
        wt = [x.tag for x in dmas.get(g + 1, []) if x.k == 'vmem']
        seq, pre, pend = proj_segment(eng, g, pre, streams, pend, wt, issued)
        p(seq)
    p('s_add_u32 s%d, s%d, %d' % (sOUT, sPO, 6 * 65536))
    p('s_nop 7')
    p([x for (_, x) in cout])
    if STAMP:
        p('s_waitcnt vmcnt(0) lgkmcnt(0)')
        p(stamp_ops()); p('s_waitcnt lgkmcnt(0)'); p(stamp_ops())
        p('s_memrealtime s[92:93]'); p('s_waitcnt lgkmcnt(0)'); p(stamp_ops()[:3])
    p('s_endpgm')
    def w_prefetch():
        p('s_mul_i32 s%d, s%d, %d' % (sT0, sH, 256 * 896))
        p('s_mul_i32 s%d, s%d, %d' % (sT1, sH, 128 * 896))
        p('buffer_load_dword v%d, v%d, s[%d:%d], s%d offen' % (vDUM, vPFO, SWO, SWO + 3, sT0))
        p('buffer_load_dword v%d, v%d, s[%d:%d], s%d offen' % (vDUM, vPFD, SWD, SWD + 3, sT1))
    p('L_k2_evt:')
    p('s_cmp_eq_u32 s%d, 1' % sROLE)
    p('s_cbranch_scc1 L_k2_evt_c')
    p('s_cmp_eq_u32 s%d, 1' % sPUBP)
    p('s_cbranch_scc0 L_k2_evt_pw')
    p('s_mov_b32 s%d, 0' % sPUBP)
    p('s_cmp_eq_u32 s%d, 0' % sW)
    p('s_cbranch_scc0 L_k2_evt_p1')
    p('v_mov_b32 v%d, 1' % vT[1])
    p('buffer_store_dword v%d, off, s[%d:%d], s%d sc1' % (vT[1], SWS, SWS + 3, sFL))
    p('L_k2_evt_p1:')
    p('s_mov_b32 s%d, 3' % sEVT)
    p('s_cmp_le_u32 s%d, 3' % sCNT)
    p('s_cbranch_scc0 L_k2_evt_back')
    p('L_k2_evt_pw:')
    w_prefetch()
    p('s_mov_b32 s%d, 0xffff' % sEVT)
    p('s_branch L_k2_evt_back')
    p('L_k2_evt_c:')
    p('s_cmp_eq_u32 s%d, 3' % sCNT)
    p('s_cbranch_scc0 L_k2_evt_c2')
    w_prefetch()
    p('s_mov_b32 s%d, 2' % sEVT)
    p('s_branch L_k2_evt_back')
    p('L_k2_evt_c2:')
    p('s_cmp_eq_u32 s%d, 2' % sCNT)
    p('s_cbranch_scc0 L_k2_evt_c1')
    p('buffer_load_dword v%d, off, s[%d:%d], s%d sc1' % (vSTAT, SWS, SWS + 3, sFL))
    p('s_mov_b32 s%d, 1' % sEVT)
    p('s_branch L_k2_evt_back')
    p('L_k2_evt_c1:')
    p('s_mov_b32 s%d, 0x400000' % sT1)
    p('L_k2_poll:')
    p('v_readfirstlane_b32 s%d, v%d' % (sT0, vSTAT))
    p('s_sub_u32 s%d, s%d, 1' % (sT1, sT1))
    p('s_cmp_eq_u32 s%d, 0' % sT1)
    p('s_cbranch_scc1 L_k2_polled')
    p('s_cmp_eq_u32 s%d, 1' % sT0)
    p('s_cbranch_scc1 L_k2_polled')
    p('s_sleep 4')
    p('buffer_load_dword v%d, off, s[%d:%d], s%d sc1' % (vSTAT, SWS, SWS + 3, sFL))
    p('s_waitcnt vmcnt(0)')
    p('s_branch L_k2_poll')
    p('L_k2_polled:')
    p('s_mov_b32 s%d, s%d' % (sT0, sPM))
    for k in range(16):
        p('buffer_load_dwordx4 %s, v%d, s[%d:%d], s%d offen offset:%d sc1' % (ar(PART + 4 * k), vL16, SWS, SWS + 3, sT0, (k % 4) * 1024))
        if k % 4 == 3: p('s_add_u32 s%d, s%d, 4096' % (sT0, sT0))
    p('buffer_load_dwordx4 %s, v%d, s[%d:%d], s%d offen sc1' % (vr(vSTAT), vL16, SWS, SWS + 3, sT0))
    p('s_mov_b32 s%d, 0xffff' % sEVT)
    p('s_branch L_k2_evt_back')
    mask_block(p, 0, 'L_k2_maskp', 'L_k2_maskp_back', True)
    mask_block(p, 0, 'L_k2_mask0', 'L_k2_mask0_back', False)
    mask_block(p, 1, 'L_k2_mask1', 'L_k2_mask1_back', False)
    slow_path(p, 0, 'L_k2_slow0')
    slow_path(p, 1, 'L_k2_slow1')
    p('L_k2_end:')
    p('s_endpgm')
    return p
```

```python
import sys, importlib
from fw import *
HEAD = open('gated_mix__compressed_kv_cla__geglu_ffn__prompt.s.ref').read().split('; Override launch')[0]

def desc(name, vgpr, accum, sgpr=102):
    return """.amdhsa_kernel %s
  .amdhsa_next_free_vgpr %d
  .amdhsa_next_free_sgpr %d
  .amdhsa_accum_offset %d
  .amdhsa_group_segment_fixed_size 0
  .amdhsa_kernarg_size 112
  .amdhsa_user_sgpr_count 2
  .amdhsa_user_sgpr_kernarg_segment_ptr 1
  .amdhsa_system_sgpr_workgroup_id_x 1
.end_amdhsa_kernel
""" % (name, vgpr, sgpr, accum)

def make(kernels, path):
    out = HEAD
    for (name, p, grid, block, lds, vgpr, accum) in kernels:
        out += '; @launch kernel=%s grid=(%d,1,1) block=(%d,1,1) lds=%d\n' % (name, grid, block, lds)
    out += '.amdgcn_target "amdgcn-amd-amdhsa--gfx950"\n.text\n'
    nerr = 0
    for (name, p, *_r) in kernels:
        p.seq = fix_m0(p.seq)
        errs = lint(p.seq, name)
        for e in errs[:20]: print(e)
        nerr += len(errs)
        out += '.globl %s\n.p2align 8\n.type %s,@function\n' % (name, name)
        out += p.text()
    out += '.section .rodata,"a"\n'
    for (name, p, grid, block, lds, vgpr, accum) in kernels:
        out += '.p2align 6\n' + desc(name, vgpr, accum)
    open(path, 'w').write(out)
    print('%s: %d bytes, %d instructions, %d lint errors' % (path, len(out), sum(len(k[1].seq) for k in kernels), nerr))
    return nerr

if __name__ == '__main__':
    which = sys.argv[1].split(',')
    path = sys.argv[2]
    ks = []
    import os
    opts = dict(kv.split('=') for kv in os.environ.get('OPTS', '').split(',') if kv)
    stamp = len(sys.argv) > 3 and sys.argv[3] == 'stamp'
    if 'k1' in which:
        import k1
        k1.STAMP = stamp
        k1.END_PF = opts.get('endpf', k1.END_PF)
        k1.VM_GAP = float(opts.get('vmgap', k1.VM_GAP))
        k1.C_READ_AT = float(opts.get('cread', k1.C_READ_AT))
        k1.ST_FLAGS = opts.get('st1', '_sc1').replace('_', ' ')
        k1.MAPB = opts.get('mapb', '0') == '1'
        if len(sys.argv) > 4: k1.ABL = set(sys.argv[4].split(','))
        ks.append((k1.NAME, k1.build(), 256, 256, 163840, 512, 256))
    if 'k2' in which:
        import k2
        k2.STAMP = stamp
        k2.SPLIT = int(opts.get('split', k2.SPLIT))
        k2.ABL = set(opts.get('abl2', '').split('+'))
        k2.ATT_STEP = float(opts.get('astep', k2.ATT_STEP))
        k2.ST_FLAGS = opts.get('st2', '_sc1').replace('_', ' ')
        ks.append((k2.NAME, k2.build(), 256, 256, 163840, 512, 256))
    if 'k3' in which:
        import k3
        k3.STAMP = stamp
        ks.append((k3.NAME, k3.build(), k3.GRID, 256, 0, k3.VGPR, k3.VGPR))
    make(ks, path)
```

```python
from fw import *
from common import *

NAME = 'k1_proj_kernel'
sW, sH, sB, sRB = 4, 5, 6, 7
SX, SC, SWQ, SWG, SWU, SWK, SWV, SWS, SGW = 8, 12, 16, 20, 24, 28, 32, 36, 40
sM0W, sM0W16, sSOFF, sXB, sCB = 44, 45, 46, 47, 48
sT0, sT1, sT2 = 49, 50, 51
sQSC = 52
sQO, sHO, sKO, sOUT = 53, 54, 55, 56
sCOL, sCOLF = 57, 58
sCNT, sCK, sGRP, sC1 = 59, 60, 61, 62
sHOUT, sNXO = 63, 3
SNX = 96
sKPTR = 64
vLANE, vL16, vL16B = 0, 1, 2
vT = list(range(3, 12))
vVA = [12, 13, 14, 15]
vVB = [16, 17, 18, 19]
vDOFF = list(range(20, 36))
vSOFF = [36, 37, 38, 39]
vRD = [40, 41]
vIO = [42, 43]
vPAT = [44, 45]
vC2, vDUM = 46, 47
XR = 48
ACCG, ACCU, TMP = 160, 192, 224
RING_A = 224
vPFQ, vPFF, vPFK = 34, 35, 11
ACCX = 128
sPFO, sGI = 100, 101
SPF2 = 68
vPFW = 10
SPF = 64
RING_V, ACCKV, TMPKV = 48, 80, 112
PRE = 3
STAMP = False
SPAN = False
MAPB = False
USE_PF = True
BULK_FIRST = False
CODE_PF = False
END_PF = 'loop'
VM_GAP = 3.8
C_READ_AT = 0.30
ST_FLAGS = ''
ABL = set()
WS_DBG = 0x0c000000

def stamp_ops():
    return [I('v_mov_b32 v%d, s92' % vDUM), I('buffer_store_dword v%d, off, s[%d:%d], s94' % (vDUM, SWS, SWS + 3)), I('s_add_u32 s94, s94, 4'), I('s_memtime s[92:93]')]

def vr(b, n=4): return 'v[%d:%d]' % (b, b + n - 1)
def ar(b, n=4): return 'a[%d:%d]' % (b, b + n - 1)
def xfrag(s, t): return vr(XR + 8 * s + 4 * t) if s < 10 else ar(192 + 8 * (s - 10) + 4 * t)
def cfrag(s, t): return ar(8 * s + 4 * t)
def acc(base, u, t): return base + 8 * u + 4 * t
def mfma(d, a, b, c): return 'v_mfma_f32_16x16x32_bf16 %s, %s, %s, %s' % (d, a, b, c)

def srd(p, base, ptr, size):
    p('s_mov_b32 s%d, s%d' % (base, ptr))
    p('s_and_b32 s%d, s%d, 0xffff' % (base + 1, ptr + 1))
    p('s_mov_b32 s%d, 0x%x' % (base + 2, size))
    p('s_mov_b32 s%d, 0x20000' % (base + 3))

class Eng:
    def __init__(self): self.sigma = 0; self.uid = 0
    def ring(self, sg, in_agpr, half):
        b = (RING_A if in_agpr else RING_V) + 8 * (sg % 4) + 4 * half
        return ('a' if in_agpr else 'v'), b
    def reads(self, st, slot, sg):
        kp, u = divmod(slot, st['nu'])
        va = vVA if st['buf'] == 0 else vVB
        res = []
        for hf in range(2):
            s = 2 * kp + hf
            cls, b = self.ring(sg, st['ring_a'], hf)
            for j in range(2):
                addr = va[u] if j == 0 else va[u ^ 2]
                self.uid += 1
                res.append(I('ds_read_b64_tr_b16 %s[%d:%d], v%d offset:%d' % (cls, b + 2 * j, b + 2 * j + 1, addr, s * 4096 + 512 * j), tag=('w', self.uid)))
        return res

def nslots(st): return (st['nk'] // 2) * st['nu']

def dma_w(st, first=0, last=None):
    res = []
    nk = st['nk']; m0 = sM0W if nk == 14 else sM0W16
    last = nk if last is None else last
    for x in st['soff']: res.append(x if isinstance(x, I) else I(x))
    for i in range(first, last):
        if i % 4 == 0 or i == first:
            res.append(I('s_add_u32 m0, s%d, %d' % (m0, st['buf'] * 65536 + (i // 4) * 4096)))
        res.append(I('buffer_load_dwordx4 v%d, s[%d:%d], s%d offen offset:%d lds' % (vDOFF[i], st['srd'], st['srd'] + 3, sSOFF, (i % 4) * 1024), tag=('wd', next_id())))
    return res

_ids = [0]
def next_id():
    _ids[0] += 1
    return _ids[0]

def pf(voff, srd_, soff):
    return I('buffer_load_dword v%d, v%d, s[%d:%d], s%d offen' % (vDUM, voff, srd_, srd_ + 3, soff))

def doff_setup(nk, rs):
    res = []
    a = res.append
    a(I('v_lshrrev_b32 v%d, 3, v%d' % (vT[0], vLANE)))
    a(I('s_mul_i32 s%d, s%d, %d' % (sT0, sW, 8 * nk * rs)))
    a(I('v_mul_u32_u24 v%d, %d, v%d' % (vT[1], rs, vT[0])))
    a(I('v_add_u32 v%d, s%d, v%d' % (vT[1], sT0, vT[1])))
    a(I('v_bfe_u32 v%d, v%d, 4, 2' % (vT[2], vLANE)))
    a(I('v_bfe_u32 v%d, v%d, 1, 2' % (vT[3], vLANE)))
    a(I('v_xor_b32 v%d, v%d, v%d' % (vT[2], vT[2], vT[3])))
    a(I('v_and_b32 v%d, 1, v%d' % (vT[3], vLANE)))
    a(I('v_lshlrev_b32 v%d, 4, v%d' % (vT[3], vT[3])))
    a(I('v_add_u32 v%d, v%d, v%d' % (vT[1], vT[1], vT[3])))
    a(I('v_lshl_add_u32 v%d, v%d, 5, v%d' % (vPAT[0], vT[2], vT[1])))
    a(I('v_xor_b32 v%d, 2, v%d' % (vT[2], vT[2])))
    a(I('v_lshl_add_u32 v%d, v%d, 5, v%d' % (vPAT[1], vT[2], vT[1])))
    for i in range(nk):
        a(I('v_add_u32 v%d, 0x%x, v%d' % (vDOFF[i], 8 * i * rs - (i % 4) * 1024, vPAT[i % 2])))
    return res

def staging_offsets(rs):
    res = []
    a = res.append
    a(I('v_lshrrev_b32 v%d, 3, v%d' % (vT[0], vLANE)))
    a(I('s_lshl_b32 s%d, s%d, 5' % (sT0, sRB)))
    a(I('v_add_u32 v%d, s%d, v%d' % (vT[1], sT0, vT[0])))
    a(I('s_mov_b32 s%d, %d' % (sT1, rs)))
    a(I('v_mul_lo_u32 v%d, s%d, v%d' % (vT[1], sT1, vT[1])))
    a(I('v_lshrrev_b32 v%d, 4, v%d' % (vT[2], vLANE)))
    a(I('v_and_b32 v%d, 7, v%d' % (vT[3], vLANE)))
    a(I('v_xor_b32 v%d, v%d, v%d' % (vT[2], vT[2], vT[3])))
    for i in range(4):
        t = vT[4]
        if i % 2:
            a(I('v_xor_b32 v%d, 4, v%d' % (t, vT[2])))
            a(I('v_lshl_add_u32 v%d, v%d, 4, v%d' % (t, t, vT[1])))
        else:
            a(I('v_lshl_add_u32 v%d, v%d, 4, v%d' % (t, vT[2], vT[1])))
        a(I('v_add_u32 v%d, 0x%x, v%d' % (vSOFF[i], 8 * i * rs - 1024 * i, t)))
    return res

def staging_dma(srdreg, ldsreg, slot, chunk):
    res = [I('s_add_u32 m0, s%d, %d' % (ldsreg, slot * 4096)), I('s_movk_i32 s%d, %d' % (sCK, chunk * 128))]
    for i in range(4):
        res.append(I('buffer_load_dwordx4 v%d, s[%d:%d], s%d offen offset:%d lds' % (vSOFF[i], srdreg, srdreg + 3, sCK, i * 1024), tag=('cd', next_id())))
    return res

def c_reads(eng, chunk):
    res = []
    for sp in range(2):
        for t in range(2):
            eng.uid += 1
            res.append(I('ds_read_b128 %s, v%d offset:%d' % (cfrag(2 * chunk + sp, t), vRD[sp], (chunk % 2) * 4096 + t * 2048), tag=('c', eng.uid)))
    return res

def segment(eng, st, nxt, pre_tags, streams, pending, wtags=None, issued=None):
    S_ = nslots(st); nu = st['nu']; sg0 = eng.sigma
    mf = []
    rd = Stream('wreads', prio=5, pace=1)
    tags = {i: pre_tags[i] for i in range(PRE)}
    for slot in range(S_):
        kp, u = divmod(slot, nu)
        if slot + PRE < S_:
            r = eng.reads(st, slot + PRE, sg0 + slot + PRE)
            tags[slot + PRE] = [x.tag for x in r]
            for q, x in enumerate(r): rd.add(x, e=4 * slot - 1, d=4 * slot + q)
    for slot in range(S_):
        kp, u = divmod(slot, nu)
        for t in range(2):
            for hf in range(2):
                s = 2 * kp + hf
                cls, b = eng.ring(sg0 + slot, st['ring_a'], hf)
                wf = '%s[%d:%d]' % (cls, b, b + 3)
                rf = st['res'](st['k0'] + s, t)
                d = vr(acc(st['acc'], u, t))
                c = '0' if (st['first'] and s == 0) else d
                if st.get('out') is not None and s == st['nk'] - 1: d = vr(acc(st['out'], u, t))
                need = ()
                if t == 0 and hf == 0:
                    need = list(tags[slot])
                    if slot % 2 == 0 and slot + 1 < S_ and slot + 1 >= PRE: need += tags[slot + 1]
                mf.append(I(mfma(d, rf, wf, c) if st['swap'] else mfma(d, wf, rf, c), need=need))
    n = len(mf)
    nxt_tags = None
    bar_gap = 4 * (S_ - PRE) + 3
    bs = Stream('bar', prio=9)
    if nxt is not None:
        bs.add(I('s_waitcnt lgkmcnt(0)', vneed=wtags if 'nowait' not in ABL else ()), e=bar_gap, d=bar_gap)
        if 'nobar' not in ABL: bs.add(I('s_barrier'), e=bar_gap, d=bar_gap)
        if STAMP:
            for x in stamp_ops(): bs.add(x, e=bar_gap, d=bar_gap)
        nxt_tags = []
        k = 0
        for ps in range(PRE):
            r = eng.reads(nxt, ps, sg0 + S_ + ps)
            nxt_tags.append([x.tag for x in r])
            for q, x in enumerate(r):
                e = bar_gap + 1 + k // 2 if ps < 2 else 4 * (S_ - 1) + q - 1
                k += 1
                e = min(max(e, bar_gap + 1), n - 1)
                bs.add(x, e=e, d=e)
    eng.sigma = sg0 + S_
    extra = []
    if st.get('mid_bar'):
        mb = Stream('midbar', prio=9)
        mb.add(I('s_waitcnt vmcnt(63)', tag='MID'), e=st['mid_bar'], d=st['mid_bar'])
        mb.add(I('s_barrier'), e=st['mid_bar'], d=st['mid_bar'])
        extra.append(mb)
    seq = pack(mf, extra + [rd, bs] + streams, budget=8, vm_gap=VM_GAP)
    for i, x in enumerate(seq):
        if x.tag == 'MID':
            seq[i] = I('s_waitcnt vmcnt(%d)' % sum(1 for y in seq[:i] if y.k == 'vmem'))
    seq = insert_vm_waits(seq, issued if issued is not None else [])
    seq, pend = insert_lgkm_waits(seq, pending)
    return seq, nxt_tags, pend, n

def store(src, voff, off, so=None):
    if 'nost' in ABL: return I('s_nop 0')
    return I('buffer_store_dwordx4 %s, v%d, s[%d:%d], s%d offen offset:%d%s' % (vr(src), voff, SWS, SWS + 3, sOUT if so is None else so, off, ST_FLAGS))

def epilogue(kind, outb, soff, scale=False):
    ops = [(-1, I(x)) for x in soff]
    frs = []
    if kind in ('q', 'k'):
        for p in range(2):
            for t in range(2): frs.append(((2 * p, t), (2 * p + 1, t), vL16 if t == 0 else vL16B, p * 1024))
    else:
        for u in range(4): frs.append(((u, 0), (u, 1), vL16, u * 1024))
    for (A, B, voff, off) in frs:
        dst = acc(outb, *A)
        for half, (u, t) in enumerate((A, B)):
            a0 = acc(outb, u, t); e = 4 * u + 2 * t + 1 - 16 + 6
            if scale and 'noscale' not in ABL:
                for r in range(4): ops.append((e, I('v_mul_f32 v%d, s%d, v%d' % (a0 + r, sQSC, a0 + r))))
            ops.append((e, I('v_cvt_pk_bf16_f32 v%d, v%d, v%d' % (dst + 2 * half, a0, a0 + 1))))
            ops.append((e, I('v_cvt_pk_bf16_f32 v%d, v%d, v%d' % (dst + 2 * half + 1, a0 + 2, a0 + 3))))
        ops.append((e, store(dst, voff, off)))
    res = []; last = -1
    for (e, ins) in ops:
        last = max(last, e); res.append((last, ins))
    return res

def epi_stream(items, dl, st_e):
    s = Stream('epi', prio=2)
    for (e, ins) in items:
        if ins.k != 'vmem' or ins.t.startswith('s_nop'): s.add(ins, e=e, d=dl)
    for (e, ins) in items:
        if ins.k == 'vmem': s.add(ins, e=st_e, d=dl)
    return s

def gelu_stream(gbase, nu, name):
    st = Stream(name, prio=1, elastic=True)
    if 'nogelu' in ABL: return st
    for u in range(nu):
        for t in range(2):
            a0 = acc(gbase, u, t); T = vT[4:8]
            for r in range(4): st.add('v_mul_f32 v%d, v%d, v%d' % (T[r], a0 + r, a0 + r))
            for r in range(4): st.add('v_fma_f32 v%d, v%d, v%d, s%d' % (T[r], T[r], vC2, sC1))
            for r in range(4): st.add('v_mul_f32 v%d, v%d, v%d' % (T[r], a0 + r, T[r]))
            for r in range(4): st.add('v_exp_f32 v%d, v%d' % (T[r], T[r]))
            for r in range(4): st.add('v_fma_f32 v%d, v%d, v%d, v%d' % (T[r], T[r], vIO[t], vIO[t]))
            for r in range(4): st.add('v_rcp_f32 v%d, v%d' % (T[r], T[r]))
            for r in range(4): st.add('v_mul_f32 v%d, v%d, v%d' % (a0 + r, a0 + r, T[r]))
    return st


def ffn_finish(st, gbase, ubase, nu, dg, e0):
    st.add('s_add_u32 s%d, s%d, %d' % (sHOUT, sHO, dg * 4096), e=e0)
    for p_ in range(2):
        for t in range(2):
            dst = acc(ubase, 2 * p_, t)
            for half in range(2):
                u = 2 * p_ + half
                if u < nu:
                    g0 = acc(gbase, u, t); u0 = acc(ubase, u, t)
                    for r in range(4): st.add('v_mul_f32 v%d, v%d, v%d' % (g0 + r, g0 + r, u0 + r), e=e0)
                    st.add('v_cvt_pk_bf16_f32 v%d, v%d, v%d' % (dst + 2 * half, g0, g0 + 1), e=e0)
                    st.add('v_cvt_pk_bf16_f32 v%d, v%d, v%d' % (dst + 2 * half + 1, g0 + 2, g0 + 3), e=e0)
                else:
                    st.add('v_mov_b32 v%d, 0' % (dst + 2 * half), e=e0)
                    st.add('v_mov_b32 v%d, 0' % (dst + 2 * half + 1), e=e0)
            st.add(store(dst, vL16, p_ * 2048 + t * 1024, so=sHOUT), e=e0)

def spread(name, ins, n, lo=0.0, hi=0.55, dl=0.62, prio=3):
    s = Stream(name, prio=prio)
    for i, x in enumerate(ins):
        e = int(n * (lo + (hi - lo) * i / len(ins)))
        s.add(x, e=e - 1 if i == 0 else e, d=int(n * dl))
    return s

def pstamp(p):
    if STAMP:
        p('s_waitcnt lgkmcnt(0)')
        p(stamp_ops())

def pf_w(stages, n):
    st = stages[n]
    so = [x.replace('s%d,' % sSOFF, 's%d,' % sPFO, 1) for x in st['soff']]
    return [I(x) for x in so] + [pf(vPFF if st['srd'] in (SWG, SWU) else vPFQ, st['srd'], sPFO)]

def pf_c(pair):
    return [I('s_movk_i32 s%d, %d' % (sPFO, pair * 256)), pf(vPFC, SC, sPFO)]

def pf_kv_static(G):
    return [I('s_add_u32 s%d, s%d, %d' % (sPFO, sCOL, G * 128)), pf(vPFK, SWK, sPFO)]

def pf_kv_loop():
    return [I('s_add_u32 s%d, s%d, 2' % (sT0, sGI)),
            GL('s_cmp_lt_u32 s%d, 4' % sT0, 's_cselect_b32 s%d, s%d, s%d' % (SPF, SWK, SWV), 's_cselect_b32 s%d, s%d, s%d' % (SPF + 1, SWK + 1, SWV + 1)),
            I('s_and_b32 s%d, s%d, 3' % (sT1, sT0)), I('s_lshl_b32 s%d, s%d, 7' % (sT1, sT1)), I('s_add_u32 s%d, s%d, s%d' % (sPFO, sCOL, sT1)),
            GL('s_cmp_lt_u32 s%d, 8' % sT0, 's_cselect_b32 s%d, s%d, 0x10000000' % (sPFO, sPFO)), pf(vPFK, SPF, sPFO)]

def flush(p, stream, issued=None):
    for (_, _, x) in stream.items:
        p(x)
        if issued is not None and x.k == 'vmem': issued.append(('flushed', id(x)))
    stream.items = []

def kv_stage(kind, half, srd_, soff, buf):
    return dict(nk=16, nu=4, k0=16 * half, first=(half == 0), res=cfrag, swap=(kind == 'v'), acc=ACCKV, ring_a=False,
                srd=srd_, soff=soff, buf=buf, out=TMPKV if half == 1 else None)

def epi_soff(kind):
    if kind == 'k': return ['s_lshl_b32 s%d, s%d, 4' % (sOUT, sGRP), 's_add_u32 s%d, s%d, s%d' % (sOUT, sOUT, sKO)]
    return ['s_lshl_b32 s%d, s%d, 5' % (sOUT, sGRP), 's_add_u32 s%d, s%d, s%d' % (sOUT, sOUT, sKO), 's_add_u32 s%d, s%d, 0x4000' % (sOUT, sOUT)]

def build():
    p = Prog()
    eng = Eng()
    p('%s:' % NAME)
    p('s_cmp_ge_u32 s2, 256')
    p('s_cbranch_scc1 L_k1_end')
    p('s_load_dwordx16 s[%d:%d], s[0:1], 0' % (sKPTR, sKPTR + 15))
    p('s_load_dwordx8 s[%d:%d], s[0:1], 64' % (sKPTR + 16, sKPTR + 23))
    p('s_load_dwordx4 s[%d:%d], s[0:1], 96' % (sKPTR + 24, sKPTR + 27))
    p('s_getpc_b64 s[92:93]')
    p('s_mov_b32 s94, 0xc000')
    p('s_mov_b32 s95, 0x20000')
    p('s_lshr_b32 s3, s2, 3')
    p('s_lshl_b32 s3, s3, 11')
    p('v_lshlrev_b32 v3, 7, v0')
    p('v_mov_b32 v4, 0x7ff00000')
    p('v_cmp_gt_u32 vcc, 16, v0')
    p('s_nop 1')
    p('v_cndmask_b32 v3, v4, v3, vcc')
    p('buffer_load_dword v%d, v3, s[92:95], s3 offen' % vDUM)
    p('v_lshrrev_b32 v3, 6, v0')
    p('v_and_b32 v%d, 63, v0' % vLANE)
    p('v_readfirstlane_b32 s%d, v3' % sW)
    p('s_and_b32 s3, s2, 7')
    p('s_lshr_b32 s%d, s2, 3' % sT0)
    if not MAPB:
        p('s_and_b32 s%d, s%d, 1' % (sT1, sT0))
        p('s_lshl_b32 s3, s3, 1')
        p('s_add_u32 s%d, s3, s%d' % (sH, sT1))
        p('s_lshr_b32 s%d, s%d, 1' % (sB, sT0))
        p('s_mov_b32 s%d, s%d' % (sGI, sB))
    else:
        p('s_lshr_b32 s%d, s3, 1' % sT1)
        p('s_lshl_b32 s%d, s%d, 2' % (sT1, sT1))
        p('s_and_b32 s%d, s%d, 3' % (sH, sT0))
        p('s_add_u32 s%d, s%d, s%d' % (sH, sH, sT1))
        p('s_lshr_b32 s%d, s%d, 2' % (sGI, sT0))
        p('s_and_b32 s3, s3, 1')
        p('s_lshl_b32 s3, s3, 3')
        p('s_add_u32 s%d, s3, s%d' % (sB, sGI))
    p('s_lshl_b32 s%d, s%d, 2' % (sRB, sB))
    p('s_add_u32 s%d, s%d, s%d' % (sRB, sRB, sW))
    p('v_lshlrev_b32 v%d, 4, v%d' % (vL16, vLANE))
    p('v_add_u32 v%d, 0x2000, v%d' % (vL16B, vL16))
    p('s_mul_i32 s%d, s%d, %d' % (sM0W, sW, 14 * 1024))
    p('s_mul_i32 s%d, s%d, %d' % (sM0W16, sW, 16 * 1024))
    p('s_mul_i32 s%d, s%d, %d' % (sXB, sW, 28 * 1024))
    p('s_add_u32 s%d, s%d, %d' % (sXB, sXB, 48 * 1024))
    p('s_lshl_b32 s%d, s%d, 13' % (sCB, sW))
    p('s_add_u32 s%d, s%d, %d' % (sCB, sCB, 128 * 1024))
    p('s_lshl_b32 s%d, s%d, 9' % (sCOL, sH))
    p('s_lshl_b32 s%d, s%d, 8' % (sCOLF, sH))
    p('s_cmp_lt_u32 s%d, 14' % sH)
    p('s_cselect_b32 s%d, s%d, 0x10000000' % (sCOLF, sCOLF))
    p('s_mov_b32 s%d, %s' % (sQSC, hexf(LOG2E / 16.0)))
    c1 = -2.0 * LOG2E * 0.7978845608028654
    p('s_mov_b32 s%d, %s' % (sC1, hexf(c1)))
    p('v_mov_b32 v%d, %s' % (vC2, hexf(c1 * 0.044715)))
    p('s_lshl_b32 s%d, s%d, 6' % (sT0, sH))
    p('s_add_u32 s%d, s%d, s%d' % (sT0, sT0, sRB))
    p('s_lshl_b32 s%d, s%d, 14' % (sQO, sT0))
    p('s_add_u32 s%d, s%d, 0x%x' % (sQO, sQO, WS_Q))
    p('s_lshl_b32 s%d, s%d, 15' % (sKO, sT0))
    p('s_lshl_b32 s%d, s%d, 4' % (sT0, sRB))
    p('s_add_u32 s%d, s%d, s%d' % (sT0, sT0, sH))
    p('s_lshl_b32 s%d, s%d, 13' % (sHO, sT0))
    p('s_add_u32 s%d, s%d, 0x%x' % (sHO, sHO, WS_H))
    p('s_waitcnt lgkmcnt(0)')
    kp = lambda n: sKPTR + KA[n] // 4
    srd(p, SX, kp('x'), SZ['x']); srd(p, SC, kp('c'), SZ['c']); srd(p, SWQ, kp('wq'), SZ['wq'])
    srd(p, SWG, kp('wg'), SZ['wg']); srd(p, SWU, kp('wu'), SZ['wu']); srd(p, SWK, kp('wuk'), SZ['wuk'])
    srd(p, SWV, kp('wuv'), SZ['wuv']); srd(p, SWS, kp('ws'), SZ['ws']); srd(p, SGW, kp('gw'), SZ['gw'])
    srd(p, SNX, kp('wuk'), SZ['wuk'])
    kp2 = lambda n: {'wo': sKPTR + KA['wo'] // 4, 'wd': sKPTR + KA['wd'] // 4}[n]
    if SPAN:
        p('s_memrealtime s[92:93]')
        p('s_lshl_b32 s94, s2, 2')
        p('s_add_u32 s94, s94, 0x%x' % (WS_DBG + (3 << 20)))
        p('s_waitcnt lgkmcnt(0)')
        p('v_mov_b32 v%d, s92' % vVA[0])
        p('buffer_store_dword v%d, off, s[%d:%d], s94' % (vVA[0], SWS, SWS + 3))
    if STAMP:
        p('s_lshl_b32 s94, s2, 2')
        p('s_add_u32 s94, s94, s%d' % sW)
        p('s_lshl_b32 s94, s94, 8')
        p('s_add_u32 s94, s94, 0x%x' % WS_DBG)
        p('s_memrealtime s[92:93]')
        p('s_waitcnt lgkmcnt(0)')
        p(stamp_ops())
        p('s_waitcnt lgkmcnt(0)')
    rw = 16 if MAPB else 8
    p('s_lshl_b32 s%d, s%d, 2' % (sT0, sGI))
    p('s_add_u32 s%d, s%d, s%d' % (sT0, sT0, sW))
    p('v_and_b32 v%d, %d, v%d' % (vT[0], rw - 1, vLANE))
    p('s_mul_i32 s%d, s%d, %d' % (sT1, sT0, rw))
    p('v_add_u32 v%d, s%d, v%d' % (vT[0], sT1, vT[0]))
    p('v_cmp_gt_u32 vcc, %d, v%d' % (rw, vLANE))
    p('v_mov_b32 v%d, 0x7ff00000' % vT[3])
    p('v_lshlrev_b32 v%d, 13, v%d' % (vT[4], vT[0]))
    p('v_cndmask_b32 v%d, v%d, v%d, vcc' % (vPFQ, vT[3], vT[4]))
    p('v_mul_u32_u24 v%d, 3584, v%d' % (vT[4], vT[0]))
    p('v_cndmask_b32 v%d, v%d, v%d, vcc' % (vPFF, vT[3], vT[4]))
    p('v_and_b32 v%d, %d, v%d' % (vT[0], 2 * rw - 1, vLANE))
    p('s_lshl_b32 s%d, s%d, 1' % (sT1, sT1))
    p('v_add_u32 v%d, s%d, v%d' % (vT[0], sT1, vT[0]))
    p('v_cmp_gt_u32 vcc, %d, v%d' % (2 * rw, vLANE))
    p('v_lshlrev_b32 v%d, 13, v%d' % (vT[4], vT[0]))
    p('s_nop 0')
    p('v_cndmask_b32 v%d, v%d, v%d, vcc' % (vPFK, vT[3], vT[4]))
    def bulk_prefetch(cnt):
        nsh = 8 if MAPB else 16
        rows = 448 // (nsh * 4)
        p('s_lshl_b32 s%d, s%d, 2' % (sT0, sGI))
        p('s_add_u32 s%d, s%d, s%d' % (sT0, sT0, sW))
        p('s_mul_i32 s%d, s%d, %d' % (sT0, sT0, rows))
        p('v_mov_b32 v%d, 0x7ff00000' % vT[3])
        for (shift, rs_, srds, so) in ((1, 3584, (SWG, SWU), sCOLF), (2, 8192, (SWQ,), sCOL)):
            per = 64 >> shift
            for part in range((rows + per - 1) // per):
                p('v_lshrrev_b32 v%d, %d, v%d' % (vT[0], shift, vLANE))
                if part: p('v_add_u32 v%d, %d, v%d' % (vT[0], part * per, vT[0]))
                p('v_cmp_gt_u32 vcc, %d, v%d' % (rows, vT[0]))
                p('v_add_u32 v%d, s%d, v%d' % (vT[0], sT0, vT[0]))
                p('v_mul_u32_u24 v%d, %d, v%d' % (vT[0], rs_, vT[0]))
                p('v_and_b32 v%d, %d, v%d' % (vT[1], (1 << shift) - 1, vLANE))
                p('v_lshl_add_u32 v%d, v%d, 7, v%d' % (vT[0], vT[1], vT[0]))
                p('v_cndmask_b32 v%d, v%d, v%d, vcc' % (vT[0], vT[3], vT[0]))
                for sr in srds:
                    p(pf(vT[0], sr, so)); cnt[0] += 1
        p('s_lshl_b32 s%d, s2, 14' % sT1)
        p('s_lshl_b32 s%d, s%d, 12' % (sT2, sW))
        p('s_add_u32 s%d, s%d, s%d' % (sPFO, sT1, sT2))
        p('v_lshlrev_b32 v%d, 7, v%d' % (vT[0], vLANE))
        p('v_cmp_gt_u32 vcc, 32, v%d' % vLANE)
        p('s_nop 1')
        p('v_cndmask_b32 v%d, v%d, v%d, vcc' % (vT[0], vT[3], vT[0]))
        p(pf(vT[0], SC, sPFO)); cnt[0] += 1
        for x in pf_kv_static(0):
            p(x); cnt[0] += (x.k == 'vmem')
    if USE_PF and BULK_FIRST: bulk_prefetch([0])
    p(staging_offsets(M * 2))
    for ch in range(7): p(staging_dma(SX, sXB, ch, ch))
    stages = []
    for dg in range(2):
        so = ['s_add_u32 s%d, s%d, %d' % (sSOFF, sCOLF, dg * 128)]
        stages.append(dict(nk=14, nu=4, k0=0, first=True, res=xfrag, swap=False, acc=ACCG if dg == 0 else TMP, ring_a=True, srd=SWG, soff=so))
        stages.append(dict(nk=14, nu=4, k0=0, first=True, res=xfrag, swap=False, acc=ACCU if dg == 0 else ACCX, ring_a=True, srd=SWU, soff=so))
    for G in range(4):
        stages.append(dict(nk=14, nu=4, k0=0, first=True, res=xfrag, swap=False, acc=ACCG, out=ACCU, ring_a=True, srd=SWQ,
                           soff=['s_add_u32 s%d, s%d, %d' % (sSOFF, sCOL, G * 128)]))
    for i, st in enumerate(stages): st['buf'] = i % 2
    stages.append(kv_stage('k', 0, SWK, ['s_mov_b32 s%d, s%d' % (sSOFF, sCOL)], 0))
    stages.append(kv_stage('k', 1, SWK, ['s_add_u32 s%d, s%d, %d' % (sSOFF, sCOL, 512 * 8192)], 1))
    st0 = stages[0]
    st0['mid_bar'] = 76
    p(doff_setup(14, F * 2))
    p(st0['soff'])
    p('s_cmp_eq_u32 s%d, 3' % sW)
    p('s_cbranch_scc1 L_k1_w3a')
    p(dma_w(st0)[1:])
    p('s_branch L_k1_w3b')
    p('L_k1_w3a:')
    p(dma_w(st0, 0, 6)[1:])
    p('L_k1_w3b:')
    p('v_lshrrev_b32 v%d, 4, v%d' % (vT[0], vLANE))
    p('v_lshlrev_b32 v%d, 4, v%d' % (vT[0], vT[0]))
    p('s_mov_b32 exec_lo, 0x00010001')
    p('s_mov_b32 exec_hi, 0x00010001')
    for s in range(14):
        p('buffer_load_dwordx4 %s, v%d, s[%d:%d], 0 offen offset:%d' % (ar(4 * s), vT[0], SGW, SGW + 3, 64 * s))
    p('s_mov_b64 exec, -1')
    cnt = [0]
    if USE_PF and not BULK_FIRST: bulk_prefetch(cnt)
    npf = cnt[0]
    p('v_lshrrev_b32 v%d, 4, v%d' % (vT[0], vLANE))
    p('v_bfe_u32 v%d, v%d, 2, 2' % (vT[1], vLANE))
    p('v_and_b32 v%d, 3, v%d' % (vT[2], vLANE))
    p('v_lshl_add_u32 v%d, v%d, 3, v%d' % (vT[3], vT[0], vT[1]))
    p('v_lshlrev_b32 v%d, 7, v%d' % (vT[3], vT[3]))
    p('v_lshl_add_u32 v%d, v%d, 3, v%d' % (vT[3], vT[2], vT[3]))
    p('v_lshrrev_b32 v%d, 1, v%d' % (vT[4], vT[1]))
    p('v_and_b32 v%d, 1, v%d' % (vT[5], vT[0]))
    p('v_lshlrev_b32 v%d, 1, v%d' % (vT[5], vT[5]))
    p('v_xor_b32 v%d, v%d, v%d' % (vT[4], vT[4], vT[5]))
    for v in range(4):
        p('v_xor_b32 v%d, %d, v%d' % (vT[5], v, vT[4]))
        p('v_lshl_add_u32 v%d, v%d, 5, v%d' % (vVA[v], vT[5], vT[3]))
        p('v_add_u32 v%d, 0x10000, v%d' % (vVB[v], vVA[v]))
    p('v_and_b32 v%d, 15, v%d' % (vT[1], vLANE))
    p('v_bfe_u32 v%d, v%d, 1, 3' % (vT[2], vLANE))
    p('v_xor_b32 v%d, v%d, v%d' % (vT[2], vT[2], vT[0]))
    p('v_lshlrev_b32 v%d, 7, v%d' % (vT[1], vT[1]))
    p('v_lshl_add_u32 v%d, v%d, 4, v%d' % (vRD[0], vT[2], vT[1]))
    p('v_xor_b32 v%d, 64, v%d' % (vRD[1], vRD[0]))
    p('v_add_u32 v%d, s%d, v%d' % (vT[6], sXB, vRD[0]))
    p('v_add_u32 v%d, s%d, v%d' % (vT[7], sXB, vRD[1]))
    p('v_add_u32 v%d, s%d, v%d' % (vRD[0], sCB, vRD[0]))
    p('v_add_u32 v%d, s%d, v%d' % (vRD[1], sCB, vRD[1]))
    pstamp(p)
    p('s_waitcnt vmcnt(%d)' % (npf + (1 if STAMP else 0)))
    pstamp(p)
    for ch in range(7):
        for sp in range(2):
            for t in range(2):
                p('ds_read_b128 %s, v%d offset:%d' % (xfrag(2 * ch + sp, t), vT[6 + sp], ch * 4096 + t * 2048))
    p(staging_offsets(DC * 2))
    p('s_waitcnt lgkmcnt(0)')
    p('s_barrier')
    pstamp(p)
    p('s_cmp_eq_u32 s%d, 3' % sW)
    p('s_cbranch_scc0 L_k1_w3c')
    p(dma_w(st0, 6, 14)[1:])
    p('L_k1_w3c:')
    pre = []
    for ps in range(PRE):
        r = eng.reads(stages[0], ps, ps); pre.append([x.tag for x in r]); p(r)
    for t in range(2):
        for s in range(14):
            p(mfma(vr(TMP + 4 * t), ar(4 * s), xfrag(s, t), '0' if s == 0 else vr(TMP + 4 * t)))
    p('v_and_b32 v%d, 15, v%d' % (vT[4], vLANE))
    p('v_lshlrev_b32 v%d, 2, v%d' % (vT[4], vT[4]))
    p('s_nop 7')
    for t in range(2): p('ds_bpermute_b32 v%d, v%d, v%d' % (vT[t], vT[4], TMP + 4 * t))
    p('s_waitcnt lgkmcnt(0)')
    for t in range(2): p('v_mul_f32 v%d, %s, v%d' % (vT[t], hexf(-LOG2E), vT[t]))
    for t in range(2): p('v_exp_f32 v%d, v%d' % (vT[t], vT[t]))
    p('s_nop 0')
    for t in range(2): p('v_add_f32 v%d, 1.0, v%d' % (vT[t], vT[t]))
    for t in range(2): p('v_rcp_f32 v%d, v%d' % (vT[t], vT[t]))
    p('s_nop 0')
    for t in range(2):
        p('v_sub_f32 v%d, 1.0, v%d' % (vT[2 + t], vT[t]))
        p('v_max_f32 v%d, 0x0da24260, v%d' % (vT[2 + t], vT[2 + t]))
    for t in range(2): p('v_rcp_f32 v%d, v%d' % (vIO[t], vT[2 + t]))
    p('s_cmp_eq_u32 s%d, 0' % sH)
    p('s_cbranch_scc0 L_k1_nog')
    p('v_and_b32 v%d, 15, v%d' % (vT[4], vLANE))
    p('v_lshlrev_b32 v%d, 2, v%d' % (vT[4], vT[4]))
    p('s_lshl_b32 s%d, s%d, 7' % (sT0, sRB))
    p('s_add_u32 s%d, s%d, 0x%x' % (sT0, sT0, WS_G))
    p('buffer_store_dword v%d, v%d, s[%d:%d], s%d offen' % (vT[0], vT[4], SWS, SWS + 3, sT0))
    p('buffer_store_dword v%d, v%d, s[%d:%d], s%d offen offset:64' % (vT[1], vT[4], SWS, SWS + 3, sT0))
    p('v_mov_b32 v%d, 0' % vT[5])
    p('v_lshlrev_b32 v%d, 2, v%d' % (vT[6], vLANE))
    p('s_lshl_b32 s%d, s%d, 8' % (sT0, sRB))
    p('s_add_u32 s%d, s%d, 0x%x' % (sT0, sT0, WS_FL))
    p('buffer_store_dword v%d, v%d, s[%d:%d], s%d offen' % (vT[5], vT[6], SWS, SWS + 3, sT0))
    p('L_k1_nog:')
    p('s_waitcnt lgkmcnt(0)')
    if STAMP:
        p(stamp_ops())
    pend = []
    carry = None; g0 = g1 = None; issued = []; ctags = None
    loop_a = kv_stage('k', 0, SNX, ['s_add_u32 s%d, s%d, 128' % (sSOFF, sCOL)], 0)
    for n_, st in enumerate(stages):
        nxt = stages[n_ + 1] if n_ + 1 < len(stages) else loop_a
        nm = nslots(st) * 4
        streams = []
        d = []
        wd = dma_w(nxt)
        if 'nodma' in ABL and n_ < 8: wd = [x for x in wd if x.k != 'vmem'] + [I('buffer_load_dword v%d, v%d, s[%d:%d], 0 offen' % (vDUM, vL16, SX, SX + 3), tag=('wd', next_id()))]
        wtags = [x.tag for x in wd if x.tag]
        d += wd
        ds_ = Stream('dma', prio=5)
        nw = sum(1 for x in d if x.k == 'vmem')
        wend = int(nw * VM_GAP) + 6
        for x in d: ds_.add(x, e=-1, d=max(wend, int(nm * 0.62)))
        su = Stream('setup', prio=3)
        if n_ == 2:
            for x in doff_setup(14, H * D * 2): su.add(x, e=wend + 2, d=int(nm * 0.95))
        if n_ == 6:
            for x in doff_setup(16, H * D * 2): su.add(x, e=wend + 2, d=int(nm * 0.95))
        streams.append(su)
        cs = Stream('cload', prio=2)
        rs = []
        rd_pair = {1: 0, 2: 1, 3: 2, 4: 3, 5: 4, 6: 5, 8: 6, 9: 7}.get(n_)
        ld_pair = {0: 0, 1: 1, 2: 2, 3: 3, 4: 4, 5: 5, 6: 6, 8: 7}.get(n_)
        if rd_pair is not None and 'noc' not in ABL:
            rs = c_reads(eng, 2 * rd_pair) + c_reads(eng, 2 * rd_pair + 1)
            rs[0] = I(rs[0].t, tag=rs[0].tag, vneed=ctags)
            lo = C_READ_AT
            for x in rs: cs.add(x, e=int(nm * lo), d=int(nm * (lo + 0.15)))
        if ld_pair is not None and 'noc' not in ABL:
            dm = staging_dma(SC, sCB, 0, 2 * ld_pair) + staging_dma(SC, sCB, 1, 2 * ld_pair + 1)
            ctags = [x.tag for x in dm if x.tag]
            if rs: dm[0] = I(dm[0].t, need=[y.tag for y in rs])
            for i_, x in enumerate(dm): ds_.add(x, e=max(wend - 4, int(nm * (C_READ_AT + 0.16))), d=nm - 10)
        if USE_PF:
            pfl = []
            if n_ <= 4: pfl += pf_w(stages, n_ + 3)
            if n_ == 7: early = pf_kv_static(1)
            elif n_ == 9: early = pf_kv_static(2)
            else: early = []
            for x in early: ds_.add(x, e=wend - 4, d=nm - 10)
            for x in pfl: ds_.add(x, e=wend, d=nm - 10)
        streams.append(ds_)
        streams.append(cs)
        if carry is not None: streams.append(epi_stream(carry, nm - 20, wend))
        newcarry = None
        if 4 <= n_ < 8: newcarry = epilogue('q', ACCU, ['s_add_u32 s%d, s%d, %d' % (sOUT, sQO, (n_ - 4) * 2048)])
        if n_ == 9: newcarry = epilogue('k', TMPKV, ['s_mov_b32 s%d, s%d' % (sOUT, sKO)], scale=True)
        if n_ == 1:
            g0 = gelu_stream(ACCG, 4, 'gelu'); g0.prio = 2; g0.items = [(6, dd, x) for (_, dd, x) in g0.items]
        if n_ == 2: ffn_finish(g0, ACCG, ACCU, 4, 0, 6)
        if n_ == 3:
            g1 = gelu_stream(TMP, 4, 'gelu1')
            tail1 = [(6, dd, x) for (_, dd, x) in g1.items]
            n0 = len(g0.items)
            g0.items += tail1
        if n_ == 4: ffn_finish(g0, TMP, ACCX, 4, 1, 6)
        if 1 <= n_ <= 9: streams.append(g0)
        seq, pre, pend, n = segment(eng, st, nxt, pre, streams, pend, wtags, issued)
        p(seq)
        if n_ == 3:
            left = len(g0.items) - len(tail1)
            if left > 0:
                head = Stream('x'); head.items = g0.items[:left]; g0.items = g0.items[left:]
                flush(p, head, issued)
            print('k1: first FFN group leftovers at end of stage 3:', max(left, 0))
        if n_ == 9:
            print('k1: second FFN group leftovers at end of stage 9:', len(g0.items))
            flush(p, g0, issued)
        carry = newcarry
    def wo_prefetch():
        srd(p, SWQ, kp2('wo'), SZ['wo']); srd(p, SWG, kp2('wd'), SZ['wd'])
        p('s_mul_i32 s%d, s2, %d' % (sT0, 14336))
        p('s_mul_i32 s%d, s%d, %d' % (sT1, sW, 3584))
        p('s_add_u32 s%d, s%d, s%d' % (sT0, sT0, sT1))
        p('v_lshlrev_b32 v%d, 7, v%d' % (vT[0], vLANE))
        p('v_mov_b32 v%d, 0x7ff00000' % vT[3])
        p('v_cmp_gt_u32 vcc, 28, v%d' % vLANE)
        p('s_mul_i32 s%d, s2, %d' % (sT2, 6272))
        p('s_mul_i32 s%d, s%d, %d' % (sT1, sW, 1568))
        p('v_cndmask_b32 v%d, v%d, v%d, vcc' % (vT[1], vT[3], vT[0]))
        p('s_add_u32 s%d, s%d, s%d' % (sT2, sT2, sT1))
        p('v_cmp_gt_u32 vcc, 14, v%d' % vLANE)
        p(pf(vT[1], SWQ, sT0))
        p('s_nop 0')
        p('v_cndmask_b32 v%d, v%d, v%d, vcc' % (vT[1], vT[3], vT[0]))
        p(pf(vT[1], SWG, sT2))
    def kv_loop(kind, label, count, pre, pend):
        own = SWK if kind == 'k' else SWV
        p('s_movk_i32 s%d, %d' % (sCNT, count))
        p(label + ':')
        a = kv_stage(kind, 0, own, None, 0)
        b = kv_stage(kind, 1, own, ['s_add_u32 s%d, s%d, s%d' % (sSOFF, sCOL, sGRP), 's_add_u32 s%d, s%d, %d' % (sSOFF, sSOFF, 512 * 8192)], 1)
        nx = ['s_cmp_eq_u32 s%d, 1' % sCNT, 's_add_u32 s%d, s%d, 128' % (sNXO, sGRP)]
        nx = ['s_add_u32 s%d, s%d, 128' % (sNXO, sGRP), 's_add_u32 s%d, s%d, s%d' % (sNXO, sNXO, sCOL)]
        if kind == 'k':
            nx += [GL('s_cmp_eq_u32 s%d, 1' % sCNT, 's_cselect_b32 s%d, s%d, s%d' % (sSOFF, sCOL, sNXO),
                     's_cselect_b32 s%d, s%d, s%d' % (SNX, SWV, SWK), 's_cselect_b32 s%d, s%d, s%d' % (SNX + 1, SWV + 1, SWK + 1))]
        else:
            nx += [GL('s_cmp_eq_u32 s%d, 1' % sCNT, 's_cselect_b32 s%d, 0x10000000, s%d' % (sSOFF, sNXO))]
        c = kv_stage(kind, 0, SNX, nx, 0)
        cout = epilogue(kind, TMPKV, [], scale=(kind == 'k'))
        db = dma_w(b)
        dstream = Stream('dma', prio=5)
        for x in db: dstream.add(x, e=-1, d=80)
        if USE_PF:
            for x in pf_kv_loop(): dstream.add(x, e=60, d=100)
            if kind == 'v' and END_PF == 'loop':
                wo_, wd_ = kp2('wo'), kp2('wd')
                sel = [GL('s_cmp_eq_u32 s%d, 5' % sGI, 's_cselect_b32 s%d, s%d, s%d' % (SPF2, wo_, wd_), 's_cselect_b32 s%d, s%d, s%d' % (SPF2 + 1, wo_ + 1, wd_ + 1),
                          's_cselect_b32 s%d, s72, s73' % sT0, 's_cselect_b32 s%d, s76, s77' % (SPF2 + 2)),
                       I('s_sub_u32 s%d, s%d, 5' % (sT1, sGI)),
                       GL('s_cmp_lt_u32 s%d, 2' % sT1, 's_cselect_b32 s%d, s%d, 0x10000000' % (sT0, sT0))]
                if CODE_PF:
                    sel.append(GL('s_cmp_eq_u32 s%d, 7' % sGI, 's_cselect_b32 s%d, s78, s%d' % (SPF2, SPF2), 's_cselect_b32 s%d, s79, s%d' % (SPF2 + 1, SPF2 + 1),
                                  's_cselect_b32 s%d, s80, s%d' % (sT0, sT0), 's_cselect_b32 s%d, 0x8000, s%d' % (SPF2 + 2, SPF2 + 2)))
                for x in sel + [I('s_and_b32 s%d, s%d, 0xffff' % (SPF2 + 1, SPF2 + 1)), pf(vPFW, SPF2, sT0)]:
                    dstream.add(x, e=70, d=108)
        seq, pre1, pend1, n = segment(eng, a, b, pre, [dstream, epi_stream(cout, 112, 74)], pend, [x.tag for x in db if x.tag], [])
        p(seq)
        d = dma_w(c)
        so = Stream('sout', prio=1)
        for x in epi_soff(kind): so.add(I(x), e=70, d=100)
        dstream2 = Stream('dma', prio=5)
        for x in d: dstream2.add(x, e=-1, d=80)
        seq, pre2, pend2, n = segment(eng, b, c, pre1, [dstream2, so], pend1, [x.tag for x in d if x.tag], [])
        p(seq)
        p('s_add_u32 s%d, s%d, 1' % (sGI, sGI))
        p('s_add_u32 s%d, s%d, 128' % (sGRP, sGRP))
        p('s_sub_u32 s%d, s%d, 1' % (sCNT, sCNT))
        p('s_cmp_lg_u32 s%d, 0' % sCNT)
        p('s_cbranch_scc1 %s' % label)
        return cout
    flat = [t for grp in pre for t in grp]
    p('s_mov_b32 s%d, 0x%x' % (SPF + 2, SZ['wuk']))
    p('s_mov_b32 s%d, 0x20000' % (SPF + 3))
    p('s_mov_b32 s%d, s%d' % (SPF, SWK))
    p('s_mov_b32 s%d, s%d' % (SPF + 1, SWK + 1))
    p('s_movk_i32 s%d, 1' % sGI)
    p('s_mov_b32 s%d, s%d' % (sOUT, sKO))
    p('s_movk_i32 s%d, 128' % sGRP)
    cout = kv_loop('k', 'L_k1_kloop', 3, pre, flat)
    p('s_nop 7')
    p([x for (_, x) in cout])
    p('s_mov_b32 s%d, 0x10000000' % sOUT)
    p('s_movk_i32 s%d, 0' % sGRP)
    if USE_PF and END_PF == 'mid': wo_prefetch()
    if USE_PF and END_PF == 'loop':
        p('s_mul_i32 s72, s2, %d' % 14336)
        p('s_mul_i32 s%d, s%d, %d' % (sT1, sW, 3584))
        p('s_add_u32 s72, s72, s%d' % sT1)
        p('s_mul_i32 s73, s2, %d' % 6272)
        p('s_mul_i32 s%d, s%d, %d' % (sT1, sW, 1568))
        p('s_add_u32 s73, s73, s%d' % sT1)
        p('v_lshlrev_b32 v%d, 7, v%d' % (vT[0], vLANE))
        p('v_mov_b32 v%d, 0x7ff00000' % vT[3])
        p('v_cmp_gt_u32 vcc, 28, v%d' % vLANE)
        p('s_mov_b32 s%d, 0x20000' % (SPF2 + 3))
        if CODE_PF:
            p('s_getpc_b64 s[78:79]')
            p('L_k1_pc:')
            p('s_add_u32 s78, s78, k2_attn_kernel-L_k1_pc')
            p('s_addc_u32 s79, s79, 0')
            p('s_mul_i32 s80, s2, 3584')
            p('s_lshl_b32 s%d, s%d, 4' % (sT1, sW))
            p('s_add_u32 s%d, s%d, s2' % (sT1, sT1))
            p('s_cmp_lt_u32 s%d, 16' % sT1)
            p('s_cselect_b32 s80, s80, 0x10000000')
        p('s_mov_b32 s76, 0x%x' % SZ['wo'])
        p('s_mov_b32 s77, 0x%x' % SZ['wd'])
        p('s_nop 0')
        p('v_cndmask_b32 v%d, v%d, v%d, vcc' % (vPFW, vT[3], vT[0]))
    cout = kv_loop('v', 'L_k1_vloop', 4, pre, flat)
    p('s_nop 7')
    p([x for (_, x) in cout])
    if USE_PF and END_PF == 'end': wo_prefetch()
    if STAMP:
        p('s_waitcnt vmcnt(0) lgkmcnt(0)')
        p(stamp_ops())
        p('s_waitcnt lgkmcnt(0)')
        p(stamp_ops())
        p('s_memrealtime s[92:93]')
        p('s_waitcnt lgkmcnt(0)')
        p(stamp_ops()[:3])
    p('L_k1_end:')
    p('s_endpgm')
    return p

if __name__ == '__main__':
    p = build()
    p.seq = fix_m0(p.seq)
    errs = lint(p.seq, 'k1')
    for e in errs[:30]: print(e)
    print(len(p.seq), 'instructions;', len(errs), 'lint errors')
    open('k1_body.s', 'w').write(p.text())
```

```python
from fw import *
from common import *

NAME = 'k2_attn_kernel'
STAMP = False
WS_DBG = 0x0c000000 + (1 << 20)
sW, sH, sJ, sROLE = 4, 5, 6, 7
SWS, SWO, SWD = 8, 12, 16
sKVB, sKB, sN, sMK, sB = 20, 21, 22, 23, 24
sM0, sT0, sT1, sT2, sT3 = 25, 26, 27, 28, 29
sPHASE, sCLAMP, sTHR, sRB, sSO = 30, 31, 32, 33, 34
sKB0, sCNT, sPM, sFL, sOUT = 35, 36, 37, 38, 39
sMSK = 40
sDIAG = 64
sRET = 48
sM0W, sSOA, sSOB, sPO = 50, 51, 52, 53
sM0L, sM0A, sM0B = 54, 55, 56
sEVT, sSLOT, sNXAT, sLAST, sPUBP, sINM = 57, 58, 59, 60, 61, 62
EXTRA = 131072
PART = 192
vSTAT = 226
sKPTR = 64
O0 = 0
S0, S1, E0, P0, P1, NEGM = 128, 144, 160, 176, 184, 192
vL = [200, 201]; vTS = [202, 203]; vM = [204, 205]
vCUR, vPRV, vL16, vDK, vLANE, vRG, vNINF = 206, 207, 208, 209, 210, 211, 212
vG = [213, 214]
vDKP = None
vT = list(range(215, 231))
vPA = [228, 230 - 4]
vVA = [231, 232, 233, 234]; vVB = [235, 236, 237, 238]; vVC = [8, 9, 10, 11]
PBUF = 49152
vDO = list(range(239, 251))
vST = [251, 252, 253, 254]
vDUM = 255
QF, KA_, KB_, VR, HF, WR = 0, 64, 96, 128, 160, 192
PK_ADD = False
ABL = set()
ATT_STEP = 4.6
ATT_START = 23
SPLIT = 36
ST_FLAGS = ''
vPFO, vPFD = 225, 230
vDP = [221, 222, 223, 224]

def vr(b, n=4): return 'v[%d:%d]' % (b, b + n - 1)
def ar(b, n=4): return 'a[%d:%d]' % (b, b + n - 1)
def mfma(d, a, b, c): return 'v_mfma_f32_16x16x32_bf16 %s, %s, %s, %s' % (d, a, b, c)
def Oacc(dt, qt): return O0 + 8 * dt + 4 * qt
def Sacc(buf, kt, qt): return (S0 if buf == 0 else S1) + 8 * kt + 4 * qt
def Ereg(kt, qt): return E0 + 8 * kt + 4 * qt
def Preg(buf, qt): return (P0 if buf == 0 else P1) + 4 * qt

def srd(p, base, ptr, size):
    p('s_mov_b32 s%d, s%d' % (base, ptr))
    p('s_and_b32 s%d, s%d, 0xffff' % (base + 1, ptr + 1))
    p('s_mov_b32 s%d, 0x%x' % (base + 2, size))
    p('s_mov_b32 s%d, 0x20000' % (base + 3))

_uid = [0]
def rd(dst, addr, off):
    _uid[0] += 1
    return I('ds_read_b128 %s, v%d offset:%d' % (dst, addr, off), tag=('r', _uid[0]))

def piece(lds_off, src_reg, src_add, m0reg=None):
    r = [I('s_add_u32 s%d, s%d, %d' % (sSO, src_reg, src_add)), I('s_add_u32 m0, s%d, %d' % (sM0 if m0reg is None else m0reg, lds_off))]
    for i in range(4):
        r.append(I('buffer_load_dwordx4 v%d, s[%d:%d], s%d offen offset:%d lds' % (vDK, SWS, SWS + 3, sSO, i * 1024)))
    return r

def qk_mfmas(sbuf, tagsA, tagsB):
    mf = []
    for kt in range(2):
        for qt in range(2):
            for s in range(8):
                d = vr(Sacc(sbuf, kt, qt))
                c = vr(NEGM + 4 * qt) if s == 0 else d
                need = ()
                if qt == 0 and kt == 0 and s % 4 == 0: need = tagsA[s:s + 4] if tagsA else ()
                if qt == 0 and kt == 1 and s == 0: need = tagsB if tagsB else ()
                mf.append(I(mfma(d, ar((KA_ if kt == 0 else KB_) + 4 * s), ar(QF + 32 * qt + 4 * s), c), need=need))
    return mf

def pv_mfmas(pbuf, vtags):
    mf = []
    for dt in range(16):
        for qt in range(2):
            d = vr(Oacc(dt, qt))
            need = ()
            if qt == 0 and dt % 4 == 0: need = [t for t in vtags[dt:dt + 4] if t]
            mf.append(I(mfma(d, ar(VR + 4 * (dt % 8)), vr(Preg(pbuf, qt)), d), need=need))
    return mf

def softmax_parts(sb):
    p1, p2 = [], []
    for qt in range(2):
        for i in range(4): p1.append(I('v_exp_f32 v%d, v%d' % (Ereg(0, qt) + i, Sacc(sb, 0, qt) + i)))
    for qt in range(2):
        e = Ereg(0, qt)
        if PK_ADD:
            p1.append(I('v_pk_add_f32 v[%d:%d], v[%d:%d], v[%d:%d]' % (vPA[qt], vPA[qt] + 1, e, e + 1, e + 2, e + 3)))
        else:
            p1.append(I('v_add_f32 v%d, v%d, v%d' % (vTS[qt], e, e + 1)))
            p2.append(I('v_add_f32 v%d, v%d, v%d' % (vTS[qt], vTS[qt], e + 2)))
            p2.append(I('v_add_f32 v%d, v%d, v%d' % (vTS[qt], vTS[qt], e + 3)))
    pk0 = []
    for qt in range(2):
        e = Ereg(0, qt)
        pk0.append(I('v_cvt_pk_bf16_f32 v%d, v%d, v%d' % (Preg(sb, qt), e, e + 1)))
        pk0.append(I('v_cvt_pk_bf16_f32 v%d, v%d, v%d' % (Preg(sb, qt) + 1, e + 2, e + 3)))
    p1 += pk0
    ex = []
    for qt in range(2):
        for i in range(4): ex.append(I('v_exp_f32 v%d, v%d' % (Ereg(1, qt) + i, Sacc(sb, 1, qt) + i)))
    adds0 = p2; p2 = []
    while ex or adds0:
        if ex: p2.append(ex.pop(0))
        if ex: p2.append(ex.pop(0))
        if adds0: p2.append(adds0.pop(0))
    for qt in range(2):
        e = Ereg(1, qt)
        if PK_ADD:
            p2.append(I('v_pk_add_f32 v[%d:%d], v[%d:%d], v[%d:%d]' % (vPA[qt], vPA[qt] + 1, vPA[qt], vPA[qt] + 1, e, e + 1)))
            p2.append(I('v_pk_add_f32 v[%d:%d], v[%d:%d], v[%d:%d]' % (vPA[qt], vPA[qt] + 1, vPA[qt], vPA[qt] + 1, e + 2, e + 3)))
            p2.append(I('v_add_f32 v%d, v%d, v%d' % (vTS[qt], vPA[qt], vPA[qt] + 1)))
        else:
            for i in range(4): p2.append(I('v_add_f32 v%d, v%d, v%d' % (vTS[qt], vTS[qt], e + i)))
        p2.append(I('v_cvt_pk_bf16_f32 v%d, v%d, v%d' % (Preg(sb, qt) + 2, e, e + 1)))
        p2.append(I('v_cvt_pk_bf16_f32 v%d, v%d, v%d' % (Preg(sb, qt) + 3, e + 2, e + 3)))
    p2.append(I('v_max_f32 v%d, v%d, v%d' % (vT[0], vTS[0], vTS[1])))
    p2.append(I('v_cmp_lt_f32 vcc, s%d, v%d' % (sTHR, vT[0])))
    return p1, p2

def l_update():
    return [I('v_add_f32 v%d, v%d, v%d' % (vL[qt], vL[qt], vTS[qt])) for qt in range(2)]

def mask_block(p, sb, label, back, nop):
    p(label + ':')
    if nop: p('s_nop 7')
    p('s_cmp_eq_u32 s%d, 0' % sMK)
    p('s_cbranch_scc1 %s_d' % label)
    for kt in range(2):
        for qt in range(2):
            r = Sacc(sb, kt, qt)
            for i in range(4): p('v_mov_b32 v%d, v%d' % (r + i, vNINF))
    p('s_branch %s' % back)
    p(label + '_d:')
    for i in range(4):
        for t in range(2):
            r = Sacc(sb, t, t) + i
            p('v_cndmask_b32 v%d, v%d, v%d, s[%d:%d]' % (r, r, vNINF, sDIAG + 2 * i, sDIAG + 2 * i + 1))
        p('v_mov_b32 v%d, v%d' % (Sacc(sb, 1, 0) + i, vNINF))
    p('s_branch %s' % back)

def allreduce(p, op, regs, tmp):
    for r, t in zip(regs, tmp): p('v_mov_b32 v%d, v%d' % (t, r))
    p('s_nop 1')
    for r, t in zip(regs, tmp): p('v_permlane32_swap_b32 v%d, v%d' % (r, t))
    p('s_nop 1')
    for r, t in zip(regs, tmp): p('%s v%d, v%d, v%d' % (op, r, r, t))
    for r, t in zip(regs, tmp): p('v_mov_b32 v%d, v%d' % (t, r))
    p('s_nop 1')
    for r, t in zip(regs, tmp): p('v_permlane16_swap_b32 v%d, v%d' % (r, t))
    p('s_nop 1')
    for r, t in zip(regs, tmp): p('%s v%d, v%d, v%d' % (op, r, r, t))

def slow_path(p, sb, label):
    ob = 1 - sb
    p(label + ':')
    p('s_nop 7')
    d = [vT[2], vT[3]]
    for qt in range(2):
        a, b = Sacc(sb, 0, qt), Sacc(sb, 1, qt)
        p('v_max3_f32 v%d, v%d, v%d, v%d' % (d[qt], a, a + 1, a + 2))
        p('v_max3_f32 v%d, v%d, v%d, v%d' % (d[qt], d[qt], a + 3, b))
        p('v_max3_f32 v%d, v%d, v%d, v%d' % (d[qt], d[qt], b + 1, b + 2))
        p('v_max_f32 v%d, v%d, v%d' % (d[qt], d[qt], b + 3))
    allreduce(p, 'v_max_f32', d, [vT[4], vT[5]])
    for qt in range(2): p('v_max_f32 v%d, s%d, v%d' % (d[qt], sCLAMP, d[qt]))
    f = [vT[4], vT[5]]
    for qt in range(2):
        p('v_add_f32 v%d, v%d, v%d' % (vM[qt], vM[qt], d[qt]))
        p('v_sub_f32 v%d, 0, v%d' % (f[qt], d[qt]))
        p('v_min_f32 v%d, 0, v%d' % (f[qt], f[qt]))
    for qt in range(2): p('v_exp_f32 v%d, v%d' % (f[qt], f[qt]))
    for qt in range(2):
        for i in range(4): p('v_sub_f32 v%d, 0, v%d' % (NEGM + 4 * qt + i, vM[qt]))
    for qt in range(2): p('v_mul_f32 v%d, v%d, v%d' % (vL[qt], vL[qt], f[qt]))
    for buf in (sb, ob):
        for kt in range(2):
            for qt in range(2):
                for i in range(4):
                    r = Sacc(buf, kt, qt) + i
                    p('v_sub_f32 v%d, v%d, v%d' % (r, r, d[qt]))
    p1, p2 = softmax_parts(sb)
    if sb == 0:
        p('s_cmp_eq_u32 s%d, 1' % sT3)
        p('s_cbranch_scc0 %s_full' % label)
        p([I(x.t) for x in p1])
        p('s_branch L_k2_pro_back')
        p(label + '_full:')
    for dt in range(16):
        for qt in range(2):
            for i in range(4):
                r = Oacc(dt, qt) + i
                p('v_mul_f32 v%d, v%d, v%d' % (r, r, f[qt]))
    p(p1); p('s_nop 0'); p(p2[:-2])
    p('s_cmp_eq_u32 s%d, 1' % sINM)
    p('s_cbranch_scc1 %s_back' % label.replace('L_k2_', 'L_k2m_'))
    p('s_branch %s_back' % label)

def stamp_ops():
    return [I('v_mov_b32 v%d, s92' % vDUM), I('buffer_store_dword v%d, off, s[%d:%d], s94' % (vDUM, SWS, SWS + 3)), I('s_add_u32 s94, s94, 4'), I('s_memtime s[92:93]')]

PRE = 3
class Eng:
    def __init__(self): self.sigma = 0; self.uid = 0
    def reads(self, buf, slot, sg):
        kp, u = divmod(slot, 4)
        va = (vVA, vVB, vVC)[buf]
        res = []
        for hf in range(2):
            s = 2 * kp + hf
            b = WR + 8 * (sg % 4) + 4 * hf
            for j in range(2):
                self.uid += 1
                res.append(I('ds_read_b64_tr_b16 a[%d:%d], v%d offset:%d' % (b + 2 * j, b + 2 * j + 1, va[u], s * 4096 + 2048 * j), tag=('w', self.uid)))
        return res

ACC, PK = 128, 160
def acc(u, t): return ACC + 8 * u + 4 * t
def bfrag(s, t): return vr(16 * s + 4 * t) if s < 8 else ar(HF + 8 * (s - 8) + 4 * t)

def proj_dma(g):
    base = (g % 3) * PBUF
    r = [I('s_add_u32 s%d, s%d, %d' % (sT0, sSOA, g * 128)), I('s_add_u32 s%d, s%d, %d' % (sT1, sSOB, g * 128))]
    for i in range(8):
        if i % 4 == 0: r.append(I('s_add_u32 m0, s%d, %d' % (sM0W, base + (i // 4) * 4096)))
        r.append(I('buffer_load_dwordx4 v%d, s[%d:%d], s%d offen offset:%d lds' % (vDO[i], SWO, SWO + 3, sT0, (i % 4) * 1024), tag=('pd', g, i)))
    r.append(I('s_add_u32 m0, s%d, %d' % (sM0, base + 32768)))
    for i in range(4):
        r.append(I('buffer_load_dwordx4 v%d, s[%d:%d], s%d offen offset:%d lds' % (vDO[8 + i], SWD, SWD + 3, sT1, i * 1024), tag=('pd', g, 8 + i)))
    return r

def proj_segment(eng, g, pre_tags, streams, pending, wtags, issued):
    S_ = 24; sg0 = eng.sigma; buf = g % 3
    mf = []; rdS = Stream('wreads', prio=5, pace=1)
    tags = {i: pre_tags[i] for i in range(PRE)}
    for slot in range(S_):
        if slot + PRE < S_:
            r = eng.reads(buf, slot + PRE, sg0 + slot + PRE)
            tags[slot + PRE] = [x.tag for x in r]
            for q, x in enumerate(r): rdS.add(x, e=4 * slot - 1, d=4 * slot + q)
    for slot in range(S_):
        kp, u = divmod(slot, 4)
        for t in range(2):
            for hf in range(2):
                s = 2 * kp + hf
                b = WR + 8 * ((sg0 + slot) % 4) + 4 * hf
                d = vr(acc(u, t))
                need = ()
                if t == 0 and hf == 0:
                    need = list(tags[slot])
                    if slot % 2 == 0 and slot + 1 < S_ and slot + 1 >= PRE: need += tags[slot + 1]
                dd = vr(PK + 8 * u + 4 * t) if s == 11 else d
                mf.append(I(mfma(dd, ar(b), bfrag(s, t), '0' if s == 0 else d), need=need))
    n = len(mf)
    bar_gap = 4 * (S_ - PRE) + 3
    bs = Stream('bar', prio=9)
    nxt = []
    if g < 6:
        bs.add(I('s_waitcnt lgkmcnt(0)', vneed=wtags), e=bar_gap, d=bar_gap)
        bs.add(I('s_barrier'), e=bar_gap, d=bar_gap)
        if STAMP:
            for x in stamp_ops(): bs.add(x, e=bar_gap, d=bar_gap)
        k = 0
        for ps in range(PRE):
            r = eng.reads((g + 1) % 3, ps, sg0 + S_ + ps)
            nxt.append([x.tag for x in r])
            for q, x in enumerate(r):
                e = bar_gap + 1 + k // 2 if ps < 2 else 4 * (S_ - 1) + q - 1
                k += 1
                e = min(max(e, bar_gap + 1), n - 1)
                bs.add(x, e=e, d=e)
    eng.sigma = sg0 + S_
    seq = pack(mf, [rdS, bs] + streams, budget=8)
    seq = insert_vm_waits(seq, issued)
    seq, pend = insert_lgkm_waits(seq, pending)
    return seq, nxt, pend

def proj_epilogue():
    ops = []; last = -1
    for p_ in range(2):
        for t in range(2):
            dst = PK + 8 * (2 * p_) + 4 * t
            for half in range(2):
                u = 2 * p_ + half; a0 = PK + 8 * u + 4 * t
                last = max(last, 4 * u + 2 * t + 1 - 16 + 6)
                ops.append((last, I('v_cvt_pk_bf16_f32 v%d, v%d, v%d' % (dst + 2 * half, a0, a0 + 1))))
                ops.append((last, I('v_cvt_pk_bf16_f32 v%d, v%d, v%d' % (dst + 2 * half + 1, a0 + 2, a0 + 3))))
            ops.append((last, I('buffer_store_dwordx4 %s, v%d, s[%d:%d], s%d offen%s' % (vr(dst), vST[2 * p_ + t], SWS, SWS + 3, sOUT, ST_FLAGS))))
    return ops

def spread(name, ins, lo, hi, dl, prio=3):
    s = Stream(name, prio=prio)
    for i, x in enumerate(ins): s.add(x, e=int(lo + (hi - lo) * i / len(ins)), d=dl)
    return s

def lpiece(i):
    r = [I('s_add_u32 m0, s%d, %d' % (sM0L, i * 16384))]
    for k in range(4 if 'nodma' not in ABL else 0):
        r.append(I('buffer_load_dwordx4 v%d, s[%d:%d], s%d offen offset:%d lds' % (vDP[i], SWS, SWS + 3, sT2, k * 1024)))
    return r

def half_iter(par, ka_in, ka_out, checked):
    sb_next = 1 - par
    kprev = vPRV if par == 0 else vCUR
    koff = 32768 if par == 0 else 0
    kb_reads = [rd(ar(KB_ + 4 * s), kprev, koff + (8 + s) * 1024) for s in range(8)]
    mfA = qk_mfmas(sb_next, [x.tag for x in ka_in], [x.tag for x in kb_reads])
    sK = Stream('kb', prio=6)
    for s, x in enumerate(kb_reads): sK.add(x, e=s, d=s + 3)
    p1_next, _ = softmax_parts(sb_next)
    _, p2 = softmax_parts(par)
    sS = Stream('soft', prio=4)
    if 'nosoft' in ABL: p2 = p2[-2:]; p1_next = []
    for i, x in enumerate(p2): sS.add(x, e=-1 + i // 3, d=30)
    voff = 16384 if par == 0 else 49152
    v_reads = [rd(ar(VR + 4 * (dt % 8)), vCUR, voff + dt * 1024) for dt in range(16)]
    sV = Stream('vpre', prio=7)
    if par == 0:
        sV.add(I('s_waitcnt vmcnt(0) lgkmcnt(0)'), e=20, d=20)
        if 'nobar' not in ABL: sV.add(I('s_barrier'), e=20, d=20)
        if STAMP:
            for x in stamp_ops(): sV.add(x, e=20, d=20)
        if checked: sV.add(GL('s_cmp_eq_u32 s%d, s%d' % (sCNT, sEVT), 's_cbranch_scc1 L_k2_evt', 'L_k2_evt_back:'), e=21, d=21)
    for dt in range(6): sV.add(v_reads[dt], e=22 + dt, d=min(30, 24 + dt))
    streamsA = [sK, sS, sV]
    mfB = pv_mfmas(par, [x.tag for x in v_reads])
    sV2 = Stream('v', prio=7)
    for dt in range(6, 16):
        e = -1 + (dt - 6) if dt < 8 else 2 * (dt - 8) + 1
        sV2.add(v_reads[dt], e=e, d=e + 2)
    sKa = Stream('ka', prio=5)
    for s, x in enumerate(ka_out): sKa.add(x, e=13 + 2 * s, d=15 + 2 * s)
    sM = Stream('mask', prio=8)
    lab = 'L_k2_mask%d' % sb_next
    for x in l_update(): sM.add(x, e=0, d=2)
    if checked:
        sM.add(I('s_sub_i32 s%d, s%d, 1' % (sMK, sMK)), e=1, d=3)
        sM.add(GL('s_cmp_le_i32 s%d, 0' % sMK, 's_cbranch_scc1 %s' % lab, lab + '_back:'), e=3, d=3)
    for i, x in enumerate(p1_next): sM.add(x, e=4 + i, d=31)
    return mfA, streamsA, mfB, [sV2, sKa, sM]

def pk_sel(qt):
    return 'op_sel_hi:[1,0]' if qt == 0 else 'op_sel:[0,1] op_sel_hi:[1,1]'

def finalize_plain(p, scp, after=None):
    for s in range(8):
        for qt in range(2):
            a, b = Oacc(2 * s, qt), Oacc(2 * s + 1, qt)
            for r in (a, a + 2, b, b + 2):
                p('v_pk_mul_f32 v[%d:%d], v[%d:%d], v[%d:%d] %s' % (r, r + 1, r, r + 1, scp, scp + 1, pk_sel(qt)))
            p('v_cvt_pk_bf16_f32 v%d, v%d, v%d' % (a, a, a + 1))
            p('v_cvt_pk_bf16_f32 v%d, v%d, v%d' % (a + 1, a + 2, a + 3))
            p('v_cvt_pk_bf16_f32 v%d, v%d, v%d' % (a + 2, b, b + 1))
            p('v_cvt_pk_bf16_f32 v%d, v%d, v%d' % (a + 3, b + 2, b + 3))
            if after: after(s, qt)

def feeder(p, items, n):
    st = {'i': 0, 'k': 0}
    def f(*_):
        st['k'] += 1
        upto = len(items) * st['k'] // n
        while st['i'] < upto:
            p(items[st['i']]); st['i'] += 1
    return f

def build():
    p = Prog()
    p('%s:' % NAME)
    p('s_cmp_ge_u32 s2, 256')
    p('s_cbranch_scc1 L_k2_end')
    p('s_load_dwordx16 s[%d:%d], s[0:1], 0' % (sKPTR, sKPTR + 15))
    p('s_load_dwordx8 s[%d:%d], s[0:1], 64' % (sKPTR + 16, sKPTR + 23))
    p('s_load_dwordx4 s[%d:%d], s[0:1], 96' % (sKPTR + 24, sKPTR + 27))
    p('s_getpc_b64 s[92:93]')
    p('s_mov_b32 s94, 0x8000')
    p('s_mov_b32 s95, 0x20000')
    p('s_lshr_b32 s3, s2, 3')
    p('s_lshl_b32 s3, s3, 11')
    p('v_lshlrev_b32 v3, 7, v0')
    p('v_mov_b32 v4, 0x7ff00000')
    p('v_cmp_gt_u32 vcc, 16, v0')
    p('s_nop 1')
    p('v_cndmask_b32 v3, v4, v3, vcc')
    p('buffer_load_dword v%d, v3, s[92:95], s3 offen' % vDUM)
    p('v_lshrrev_b32 v3, 6, v0')
    p('v_and_b32 v%d, 63, v0' % vLANE)
    p('v_readfirstlane_b32 s%d, v3' % sW)
    p('s_and_b32 s3, s2, 7')
    p('s_lshr_b32 s%d, s2, 3' % sT0)
    p('s_and_b32 s%d, s%d, 1' % (sT1, sT0))
    p('s_lshl_b32 s3, s3, 1')
    p('s_add_u32 s%d, s3, s%d' % (sH, sT1))
    p('s_lshr_b32 s%d, s%d, 1' % (sT0, sT0))
    p('s_lshr_b32 s%d, s%d, 3' % (sROLE, sT0))
    p('s_and_b32 s%d, s%d, 7' % (sJ, sT0))
    p('s_mov_b32 s%d, s%d' % (sSLOT, sT0))
    p('v_lshlrev_b32 v%d, 4, v%d' % (vL16, vLANE))
    p('s_lshl_b32 s%d, s%d, 12' % (sM0, sW))
    p('v_add_u32 v%d, s%d, v%d' % (vDK, sM0, vL16))
    p('s_lshl_b32 s%d, s%d, 13' % (sM0W, sW))
    p('s_lshl_b32 s%d, s%d, 21' % (sKVB, sH))
    p('v_and_b32 v%d, 15, v%d' % (vT[0], vLANE))
    p('v_lshrrev_b32 v%d, 4, v%d' % (vT[1], vLANE))
    p('v_lshlrev_b32 v%d, 2, v%d' % (vT[2], vT[1]))
    p('v_sub_u32 v%d, v%d, v%d' % (vRG, vT[0], vT[2]))
    p('v_mov_b32 v%d, 0xff800000' % vNINF)
    p('s_mov_b32 s%d, %s' % (sTHR, hexf(2.0 ** 20)))
    def g_loads(rb):
        p('v_and_b32 v%d, 15, v%d' % (vT[1], vLANE))
        p('v_lshlrev_b32 v%d, 2, v%d' % (vT[1], vT[1]))
        p('s_lshl_b32 s%d, s%d, 7' % (sT0, rb))
        p('s_add_u32 s%d, s%d, 0x%x' % (sT0, sT0, WS_G))
        for qt in range(2): p('buffer_load_dword v%d, v%d, s[%d:%d], s%d offen offset:%d' % (vG[qt], vT[1], SWS, SWS + 3, sT0, 64 * qt))
    def h_items(rb):
        r = [I('s_lshl_b32 s%d, s%d, 4' % (sSO, rb)), I('s_add_u32 s%d, s%d, s%d' % (sSO, sSO, sH)), I('s_lshl_b32 s%d, s%d, 13' % (sSO, sSO)),
             I('s_add_u32 s%d, s%d, 0x%x' % (sSO, sSO, WS_H))]
        for q4 in range(2):
            for i in range(4):
                r.append(I('buffer_load_dwordx4 %s, v%d, s[%d:%d], s%d offen offset:%d' % (ar(HF + 16 * q4 + 4 * i), vL16, SWS, SWS + 3, sSO, i * 1024)))
            if q4 < 1: r.append(I('s_add_u32 s%d, s%d, 4096' % (sSO, sSO)))
        return r
    def q_items(rb, so):
        r = [I('s_lshl_b32 s%d, s%d, 6' % (so, sH)), I('s_add_u32 s%d, s%d, s%d' % (so, so, rb)), I('s_lshl_b32 s%d, s%d, 14' % (so, so)),
             I('s_add_u32 s%d, s%d, 0x%x' % (so, so, WS_Q))]
        for q4 in range(4):
            for i in range(4):
                r.append(I('buffer_load_dwordx4 %s, v%d, s[%d:%d], s%d offen offset:%d' % (ar(QF + 16 * q4 + 4 * i), vL16, SWS, SWS + 3, so, i * 1024)))
            if q4 < 3: r.append(I('s_add_u32 s%d, s%d, 4096' % (so, so)))
        return r
    def seg_state(zero_o=True):
        if zero_o:
            for r in range(0, 128, 2): p('v_mov_b64 v[%d:%d], 0' % (O0 + r, O0 + r + 1))
        for r in range(0, 8, 2): p('v_mov_b64 v[%d:%d], 0' % (NEGM + r, NEGM + r + 1))
        for qt in range(2):
            p('v_mov_b32 v%d, 0' % vL[qt]); p('v_mov_b32 v%d, 0' % vM[qt])
        p('v_add_u32 v%d, 0x%x, v%d' % (vPRV, EXTRA - 16384, vL16))
    p('s_sub_u32 s%d, 15, s%d' % (sB, sJ))
    p('s_lshl_b32 s%d, s%d, 2' % (sT0, sJ))
    p('s_sub_u32 s%d, %d, s%d' % (sT0, 64 - SPLIT, sT0))
    p('s_cmp_eq_u32 s%d, 0' % sROLE)
    p('s_cselect_b32 s%d, %d, 0' % (sKB0, SPLIT))
    p('s_cselect_b32 s%d, s%d, %d' % (sN, sT0, SPLIT))
    p('s_cselect_b32 s%d, 0xffff, 3' % sEVT)
    p('s_cselect_b32 s%d, s%d, 0x10000000' % (sLAST, sKVB))
    p('s_mov_b32 s%d, 0' % sPHASE)
    p('s_mov_b32 s%d, 0' % sPUBP)
    assert SPLIT == 36
    p('s_cmp_eq_u32 s%d, 7' % sJ)
    p('s_cbranch_scc0 L_k2_split')
    p('s_add_u32 s%d, s%d, 7' % (sB, sROLE))
    p('s_add_u32 s%d, s%d, 1' % (sN, sB))
    p('s_lshl_b32 s%d, s%d, 2' % (sN, sN))
    p('s_mov_b32 s%d, 0' % sKB0)
    p('s_mov_b32 s%d, 0' % sROLE)
    p('s_mov_b32 s%d, 1' % sPHASE)
    p('s_mov_b32 s%d, 3' % sEVT)
    p('s_mov_b32 s%d, 0x10000000' % sLAST)
    p('L_k2_split:')
    p('s_lshl_b32 s%d, s%d, 2' % (sRB, sB))
    p('s_add_u32 s%d, s%d, s%d' % (sRB, sRB, sW))
    p('s_sub_u32 s%d, s%d, s%d' % (sMK, sRB, sKB0))
    p('s_lshl_b32 s%d, s%d, 15' % (sKB, sKB0))
    p('s_add_u32 s%d, s%d, s%d' % (sKB, sKB, sKVB))
    p('s_lshr_b32 s%d, s%d, 1' % (sCNT, sN))
    for i, off in enumerate((65536, 16384, 98304, 49152)): p('v_add_u32 v%d, 0x%x, v%d' % (vDP[i], off, vDK))
    p('s_waitcnt lgkmcnt(0)')
    kp = lambda n: sKPTR + KA[n] // 4
    srd(p, SWS, kp('ws'), SZ['ws'])
    if STAMP:
        p('s_lshl_b32 s94, s2, 2')
        p('s_add_u32 s94, s94, s%d' % sW)
        p('s_lshl_b32 s94, s94, 8')
        p('s_add_u32 s94, s94, 0x%x' % WS_DBG)
        p('s_memrealtime s[92:93]')
        p('s_waitcnt lgkmcnt(0)')
        p(stamp_ops())
        p('s_waitcnt lgkmcnt(0)')
    p(piece(EXTRA, sKB, 0))
    p(q_items(sRB, sT0))
    p('s_mov_b32 s%d, s%d' % (sT1, sRB))
    p('s_add_u32 s%d, s%d, s%d' % (sT2, sROLE, sPHASE))
    p('s_cmp_lg_u32 s%d, 0' % sT2)
    p('s_cbranch_scc1 L_k2_g0')
    p('s_lshl_b32 s%d, s%d, 2' % (sT1, sJ))
    p('s_add_u32 s%d, s%d, s%d' % (sT1, sT1, sW))
    p('L_k2_g0:')
    g_loads(sT1)
    p('v_mov_b32 v%d, v%d' % (vCUR, vL16))
    srd(p, SWO, kp('wo'), SZ['wo']); srd(p, SWD, kp('wd'), SZ['wd'])
    p('v_lshrrev_b32 v%d, 4, v%d' % (vT[1], vLANE))
    p('v_bfe_u32 v%d, v%d, 2, 2' % (vT[2], vLANE))
    p('v_and_b32 v%d, 3, v%d' % (vT[3], vLANE))
    p('v_lshl_add_u32 v%d, v%d, 2, v%d' % (vT[4], vT[1], vT[2]))
    p('v_bfe_u32 v%d, v%d, 1, 2' % (vT[5], vT[4]))
    p('v_bfe_u32 v%d, v%d, 3, 1' % (vT[0], vT[4]))
    p('v_lshlrev_b32 v%d, 1, v%d' % (vT[0], vT[0]))
    p('v_xor_b32 v%d, v%d, v%d' % (vT[5], vT[5], vT[0]))
    p('v_lshlrev_b32 v%d, 7, v%d' % (vT[4], vT[4]))
    p('v_lshl_add_u32 v%d, v%d, 3, v%d' % (vT[4], vT[3], vT[4]))
    for v in range(4):
        p('v_xor_b32 v%d, %d, v%d' % (vT[0], v, vT[5]))
        p('v_lshl_add_u32 v%d, v%d, 5, v%d' % (vVA[v], vT[0], vT[4]))
        p('v_add_u32 v%d, %d, v%d' % (vVB[v], PBUF, vVA[v]))
    p('v_lshrrev_b32 v%d, 3, v%d' % (vT[0], vLANE))
    p('v_mul_u32_u24 v%d, 896, v%d' % (vT[1], vT[0]))
    p('v_bfe_u32 v%d, v%d, 4, 2' % (vT[2], vLANE))
    p('v_bfe_u32 v%d, v%d, 1, 2' % (vT[3], vLANE))
    p('v_xor_b32 v%d, v%d, v%d' % (vT[2], vT[2], vT[3]))
    p('v_and_b32 v%d, 1, v%d' % (vT[3], vLANE))
    p('v_lshl_add_u32 v%d, v%d, 4, v%d' % (vT[1], vT[3], vT[1]))
    p('v_lshl_add_u32 v%d, v%d, 5, v%d' % (vT[4], vT[2], vT[1]))
    p('v_xor_b32 v%d, 2, v%d' % (vT[2], vT[2]))
    p('v_lshl_add_u32 v%d, v%d, 5, v%d' % (vT[5], vT[2], vT[1]))
    p('s_mul_i32 s%d, s%d, %d' % (sT0, sW, 64 * 896))
    p('s_mul_i32 s%d, s%d, %d' % (sT1, sW, 32 * 896))
    for i in range(8):
        p('v_add_u32 v%d, 0x%x, v%d' % (vDO[i], 8 * i * 896 - (i % 4) * 1024, vT[4 + i % 2]))
        p('v_add_u32 v%d, s%d, v%d' % (vDO[i], sT0, vDO[i]))
    for i in range(4):
        p('v_add_u32 v%d, 0x%x, v%d' % (vDO[8 + i], 8 * i * 896 - i * 1024, vT[4 + i % 2]))
        p('v_add_u32 v%d, s%d, v%d' % (vDO[8 + i], sT1, vDO[8 + i]))
    for i in range(4): p('v_add_u32 v%d, 0x%x, v%d' % (vST[i], (i // 2) * 32768 + (i % 2) * 16384, vL16))
    for i in range(4): p('v_cmp_gt_i32 s[%d:%d], %d, v%d' % (sDIAG + 2 * i, sDIAG + 2 * i + 1, i, vRG))
    p('s_lshl_b32 s%d, s%d, 3' % (sT0, sH))
    p('s_add_u32 s%d, s%d, s%d' % (sT0, sT0, sJ))
    p('s_lshl_b32 s%d, s%d, 7' % (sFL, sT0))
    p('s_add_u32 s%d, s%d, 0x%x' % (sFL, sFL, WS_FL))
    p('s_lshl_b32 s%d, s%d, 2' % (sT0, sT0))
    p('s_add_u32 s%d, s%d, s%d' % (sT0, sT0, sW))
    p('s_mul_i32 s%d, s%d, %d' % (sPM, sT0, 17 * 1024))
    p('s_add_u32 s%d, s%d, 0x%x' % (sPM, sPM, WS_PM))
    p('s_lshl_b32 s%d, s%d, 2' % (sT0, sSLOT))
    p('s_add_u32 s%d, s%d, s%d' % (sT0, sT0, sW))
    p('s_mul_i32 s%d, s%d, %d' % (sT1, sT0, 28 * 128))
    p('v_lshlrev_b32 v%d, 7, v%d' % (vT[0], vLANE))
    p('v_mov_b32 v%d, 0x7ff00000' % vT[1])
    p('v_cmp_gt_u32 vcc, 28, v%d' % vLANE)
    p('v_add_u32 v%d, s%d, v%d' % (vT[2], sT1, vT[0]))
    p('s_mul_i32 s%d, s%d, %d' % (sT1, sT0, 14 * 128))
    p('v_cndmask_b32 v%d, v%d, v%d, vcc' % (vPFO, vT[1], vT[2]))
    p('v_cmp_gt_u32 vcc, 14, v%d' % vLANE)
    p('v_add_u32 v%d, s%d, v%d' % (vT[2], sT1, vT[0]))
    p('s_nop 0')
    p('v_cndmask_b32 v%d, v%d, v%d, vcc' % (vPFD, vT[1], vT[2]))
    seg_state()
    if STAMP: p('s_waitcnt lgkmcnt(0)'); p(stamp_ops())
    p('s_waitcnt vmcnt(%d)' % (1 if STAMP else 0))
    if STAMP: p('s_waitcnt lgkmcnt(0)'); p(stamp_ops())
    p('s_barrier')
    p('v_add_u32 v%d, 0x%x, v%d' % (vT[0], EXTRA, vL16))
    p([rd(ar(KA_ + 4 * s), vT[0], s * 1024) for s in range(8)])
    p([rd(ar(KB_ + 4 * s), vT[0], (8 + s) * 1024) for s in range(8)])
    p('s_mov_b32 s%d, s%d' % (sM0L, sM0))
    p('s_mov_b32 s%d, s%d' % (sT2, sKB))
    rest = piece(EXTRA + 16384, sKB, 32768)
    for i in (1, 0, 3, 2): rest += lpiece(i)
    qk0 = [I(x.t) for x in qk_mfmas(0, None, None)]
    p('s_waitcnt lgkmcnt(8)')
    k_ = 0
    for i, m_ in enumerate(qk0):
        if i == 16: p('s_waitcnt lgkmcnt(0)')
        p(m_)
        for _ in range(1 if i < 26 else 0):
            if k_ < len(rest): p(rest[k_]); k_ += 1
            while k_ < len(rest) and rest[k_ - 1].k == 'salu' and rest[k_].k == 'salu': p(rest[k_]); k_ += 1
    p(rest[k_:])
    p('s_add_u32 s%d, s%d, 0x10000' % (sM0L, sM0))
    if STAMP: p('s_waitcnt lgkmcnt(0)'); p(stamp_ops())
    p('s_waitcnt vmcnt(%d)' % (17 if STAMP else 16))
    p('s_barrier')
    p([rd(ar(KA_ + 4 * s), vT[0], 16384 + s * 1024) for s in range(8)])
    p('s_branch L_k2_pm')
    p('L_k2_pc:')
    p('v_add_u32 v%d, 0x%x, v%d' % (vT[0], EXTRA, vL16))
    p([rd(ar(KA_ + 4 * s), vT[0], s * 1024) for s in range(8)])
    p([rd(ar(KB_ + 4 * s), vT[0], (8 + s) * 1024) for s in range(8)])
    p('s_waitcnt lgkmcnt(8)')
    p([I(x.t) for x in qk0[:16]])
    p('s_waitcnt lgkmcnt(0)')
    p([rd(ar(KA_ + 4 * s), vT[0], 16384 + s * 1024) for s in range(8)])
    p([I(x.t) for x in qk0[16:]])
    p('L_k2_pm:')
    p('s_cmp_le_i32 s%d, 0' % sMK)
    p('s_cbranch_scc1 L_k2_maskp')
    p('L_k2_maskp_back:')
    p('s_mov_b32 s%d, %s' % (sCLAMP, hexf(-1e30)))
    p('s_mov_b32 s%d, 1' % sT3)
    p('s_branch L_k2_slow0')
    p('L_k2_pro_back:')
    p('s_mov_b32 s%d, 0' % sCLAMP)
    p('s_mov_b32 s%d, 0' % sT3)
    p('s_waitcnt lgkmcnt(0)')
    if STAMP: p(stamp_ops())
    def gen_body(checked):
        pre = 'L_k2' if checked else 'L_k2m'
        ka0 = [rd(ar(KA_ + 4 * s), vCUR, s * 1024) for s in range(8)]
        ka1 = [rd(ar(KA_ + 4 * s), vCUR, 32768 + s * 1024) for s in range(8)]
        mfA0, stA0, mfB0, stB0 = half_iter(0, ka1, ka0, checked)
        mfA1, stA1, mfB1, stB1 = half_iter(1, ka0, ka1, checked)
        dA0 = Stream('dma', prio=3); dB = Stream('dma', prio=3); dA = Stream('dma', prio=3); dB1 = Stream('dma', prio=3)
        if checked:
            for x in [I('s_add_u32 s%d, s%d, 65536' % (sKB, sKB)), GL('s_cmp_eq_u32 s%d, 1' % sCNT, 's_cselect_b32 s%d, s%d, s%d' % (sT2, sLAST, sKB))]:
                dB.add(x, e=4, d=8)
            start, step = 36, ATT_STEP
        else:
            dA0.add(I('s_add_u32 s%d, s%d, 65536' % (sKB, sKB)), e=8, d=18)
            dA0.add(I('s_mov_b32 s%d, s%d' % (sT2, sKB)), e=8, d=18)
            start, step = ATT_START, ATT_STEP
        for pc in range(4):
            for k, x in enumerate(lpiece(pc)):
                gg = start + int(step * (4 * pc + max(k - 1, 0))) - (1 if k == 0 else 0)
                ph, off = divmod(gg, 32)
                (dA0, dB, dA, dB1)[ph].add(x, e=off, d=min(31, off + 3))
        ctl = Stream('ctl', prio=2)
        c_ = [I('s_xor_b32 s%d, s%d, 0x10000' % (sM0L, sM0L)), I('s_sub_u32 s%d, s%d, 1' % (sCNT, sCNT))]
        if not checked: c_.append(I('s_sub_i32 s%d, s%d, 2' % (sMK, sMK)))
        for x in c_: ctl.add(x, e=22, d=30)
        for x in [I('v_mov_b32 v%d, v%d' % (vPRV, vCUR)), I('v_xor_b32 v%d, 0x10000, v%d' % (vCUR, vCUR))]: ctl.add(x, e=30, d=31)
        body = []
        body += pack(mfA0, stA0 + [dA0], budget=8, last_reserve=True)
        body += [I('s_cbranch_vccnz L_k2_slow0'), I(pre + '_slow0_back:')]
        body += pack(mfB0, stB0 + [dB], budget=8, last_reserve=True)
        body += pack(mfA1, stA1 + [dA], budget=8, last_reserve=True)
        body += [I('s_cbranch_vccnz L_k2_slow1'), I(pre + '_slow1_back:')]
        body += pack(mfB1, stB1 + [dB1, ctl], budget=8, last_reserve=True)
        return body
    bodies = {c: gen_body(c) for c in (True, False)}
    tails = {}
    for c in bodies:
        _, pend = insert_lgkm_waits(bodies[c], [])
        txt = {x.tag: x.t for x in bodies[c] if x.k == 'ds'}
        tails[c] = [txt[t] for t in pend]
    seqs = {}
    for c in bodies:
        inv = {x.t: x.tag for x in bodies[c] if x.k == 'ds' and x.t in tails[True] + tails[False]}
        variants = []
        for o in bodies:
            pend = [inv[t] for t in tails[o]]
            variants.append(insert_lgkm_waits(bodies[c], pend)[0])
        a_, b_ = variants
        assert [x.t for x in a_ if x.k != 'wait'] == [x.t for x in b_ if x.k != 'wait']
        same = [x.t for x in a_] == [x.t for x in b_]
        assert same, 'loop bodies disagree on the entry state'
        seqs[c] = a_
    p('s_mov_b32 s%d, 0' % sINM)
    p('L_k2_loop:')
    p(seqs[True])
    p('s_cmp_eq_u32 s%d, 0' % sCNT)
    p('s_cbranch_scc1 L_k2_exit')
    p('s_cmp_le_u32 s%d, 3' % sCNT)
    p('s_cbranch_scc1 L_k2_loop')
    p('s_mov_b32 s%d, 1' % sINM)
    p('L_k2_main:')
    p(seqs[False])
    p('s_cmp_gt_u32 s%d, 3' % sCNT)
    p('s_cbranch_scc1 L_k2_main')
    p('s_mov_b32 s%d, 0' % sINM)
    p('s_branch L_k2_loop')
    p('L_k2_exit:')
    if STAMP: p(stamp_ops())
    allreduce(p, 'v_add_f32', vL, [vT[0], vT[1]])
    p('s_cmp_eq_u32 s%d, 1' % sROLE)
    p('s_cbranch_scc1 L_k2_fin')
    p('s_cmp_eq_u32 s%d, 1' % sPHASE)
    p('s_cbranch_scc1 L_k2_fin')
    p('s_waitcnt lgkmcnt(0)')
    for qt in range(2): p('v_rcp_f32 v%d, v%d' % (vT[1 + qt], vL[qt]))
    for qt in range(2): p('v_cmp_lt_f32 s[%d:%d], 0, v%d' % (sMSK + 2 * qt, sMSK + 2 * qt + 1, vL[qt]))
    p('s_nop 1')
    for qt in range(2): p('v_cndmask_b32 v%d, 0, v%d, s[%d:%d]' % (vT[1 + qt], vT[1 + qt], sMSK + 2 * qt, sMSK + 2 * qt + 1))
    st = vSTAT
    p('v_mov_b32 v%d, v%d' % (st, vM[0])); p('v_mov_b32 v%d, v%d' % (st + 1, vM[1]))
    p('v_mov_b32 v%d, v%d' % (st + 2, vL[0])); p('v_mov_b32 v%d, v%d' % (st + 3, vL[1]))
    p('s_lshl_b32 s%d, s%d, 2' % (sT1, sJ))
    p('s_add_u32 s%d, s%d, s%d' % (sT1, sT1, sW))
    nxt_loads = piece(EXTRA, sKVB, 0) + q_items(sT1, sT2) + piece(EXTRA + 16384, sKVB, 32768)
    finalize_plain(p, vT[1], after=feeder(p, nxt_loads, 16))
    p('s_add_u32 s%d, s%d, 16384' % (sT0, sPM))
    p('buffer_store_dwordx4 %s, v%d, s[%d:%d], s%d offen sc1' % (vr(st), vL16, SWS, SWS + 3, sT0))
    p('s_mov_b32 s%d, s%d' % (sT0, sPM))
    prev = []
    for s_ in range(8):
        for qt in range(2):
            k = 2 * s_ + qt
            p('buffer_store_dwordx4 %s, v%d, s[%d:%d], s%d offen offset:%d sc1' % (vr(16 * s_ + 4 * qt), vL16, SWS, SWS + 3, sT0, (k % 4) * 1024))
            if k % 4 == 3: p('s_add_u32 s%d, s%d, 4096' % (sT0, sT0))
            b = Oacc(2 * s_ + 1, qt)
            p('v_mov_b64 v[%d:%d], 0' % (b, b + 1)); p('v_mov_b64 v[%d:%d], 0' % (b + 2, b + 3))
            for a in prev: p('v_mov_b64 v[%d:%d], 0' % (a, a + 1)); p('v_mov_b64 v[%d:%d], 0' % (a + 2, a + 3))
            prev[:] = [Oacc(2 * s_, qt)]
    p('s_mov_b32 s%d, s%d' % (sB, sJ))
    p('s_mov_b32 s%d, 0' % sKB0)
    p('s_add_u32 s%d, s%d, 1' % (sN, sJ))
    p('s_lshl_b32 s%d, s%d, 2' % (sN, sN))
    p('s_mov_b32 s%d, 1' % sPHASE)
    p('s_mov_b32 s%d, 1' % sPUBP)
    p('s_lshl_b32 s%d, s%d, 2' % (sRB, sB))
    p('s_add_u32 s%d, s%d, s%d' % (sRB, sRB, sW))
    p('s_mov_b32 s%d, s%d' % (sMK, sRB))
    p('s_mov_b32 s%d, s%d' % (sKB, sKVB))
    p('s_lshr_b32 s%d, s%d, 1' % (sCNT, sN))
    p('s_mov_b32 s%d, s%d' % (sEVT, sCNT))
    p('s_mov_b32 s%d, 0x10000000' % sLAST)
    seg_state(zero_o=False)
    a = prev[0]
    p('v_mov_b64 v[%d:%d], 0' % (a, a + 1)); p('v_mov_b64 v[%d:%d], 0' % (a + 2, a + 3))
    p('s_waitcnt vmcnt(17) lgkmcnt(0)')
    p('s_barrier')
    p('s_branch L_k2_pc')
    p('L_k2_fin:')
    p('s_waitcnt vmcnt(0) lgkmcnt(0)')
    p('s_barrier')
    p('s_mul_i32 s%d, s%d, %d' % (sSOA, sH, 256 * 896))
    p('s_mul_i32 s%d, s%d, %d' % (sSOB, sH, 128 * 896))
    pd0 = proj_dma(0); pd1 = proj_dma(1)
    p('s_cmp_eq_u32 s%d, 1' % sROLE)
    p('s_cbranch_scc1 L_k2_merge')
    for qt in range(2): p('v_rcp_f32 v%d, v%d' % (vT[1 + qt], vL[qt]))
    p('s_nop 0')
    for qt in range(2): p('v_mul_f32 v%d, v%d, v%d' % (vT[1 + qt], vT[1 + qt], vG[qt]))
    finalize_plain(p, vT[1], after=feeder(p, h_items(sRB) + pd0 + pd1, 16))
    p('s_branch L_k2_proj')
    p('L_k2_merge:')
    mf_, w1, w2, lf = [vT[5], vT[6]], [vT[1], vT[2]], [vT[3], vT[4]], [vT[7], vT[8]]
    for qt in range(2):
        p('v_max_f32 v%d, v%d, v%d' % (mf_[qt], vM[qt], st + qt))
        p('v_sub_f32 v%d, v%d, v%d' % (w1[qt], vM[qt], mf_[qt]))
        p('v_sub_f32 v%d, v%d, v%d' % (w2[qt], st + qt, mf_[qt]))
    for qt in range(2):
        p('v_exp_f32 v%d, v%d' % (w1[qt], w1[qt])); p('v_exp_f32 v%d, v%d' % (w2[qt], w2[qt]))
    p('s_nop 0')
    for qt in range(2):
        p('v_mul_f32 v%d, v%d, v%d' % (w2[qt], w2[qt], st + 2 + qt))
        p('v_fma_f32 v%d, v%d, v%d, v%d' % (lf[qt], w1[qt], vL[qt], w2[qt]))
    for qt in range(2): p('v_rcp_f32 v%d, v%d' % (lf[qt], lf[qt]))
    p('s_nop 0')
    for qt in range(2):
        p('v_mul_f32 v%d, v%d, v%d' % (lf[qt], lf[qt], vG[qt]))
        p('v_mul_f32 v%d, v%d, v%d' % (w1[qt], w1[qt], lf[qt]))
        p('v_mul_f32 v%d, v%d, v%d' % (w2[qt], w2[qt], lf[qt]))
    feed = feeder(p, h_items(sRB) + [I(x.t) for x in pd0 + pd1], 16)
    for s in range(8):
        for qt in range(2):
            src, un = 128, 136
            for k in range(4): p('v_accvgpr_read_b32 v%d, a%d' % (src + k, PART + 4 * (2 * s + qt) + k))
            a, b = Oacc(2 * s, qt), Oacc(2 * s + 1, qt)
            prs = (a, a + 2, b, b + 2)
            for k in range(4):
                p('v_lshlrev_b32 v%d, 16, v%d' % (un + 2 * k, src + k))
                p('v_and_b32 v%d, 0xffff0000, v%d' % (un + 2 * k + 1, src + k))
            for k in range(4):
                p('v_pk_mul_f32 v[%d:%d], v[%d:%d], v[%d:%d] %s' % (prs[k], prs[k] + 1, prs[k], prs[k] + 1, w1[0], w1[0] + 1, pk_sel(qt)))
            for k in range(4):
                sel = 'op_sel_hi:[1,0,1]' if qt == 0 else 'op_sel:[0,1,0] op_sel_hi:[1,1,1]'
                p('v_pk_fma_f32 v[%d:%d], v[%d:%d], v[%d:%d], v[%d:%d] %s' % (prs[k], prs[k] + 1, un + 2 * k, un + 2 * k + 1, w2[0], w2[0] + 1, prs[k], prs[k] + 1, sel))
            p('v_cvt_pk_bf16_f32 v%d, v%d, v%d' % (a, a, a + 1))
            p('v_cvt_pk_bf16_f32 v%d, v%d, v%d' % (a + 1, a + 2, a + 3))
            p('v_cvt_pk_bf16_f32 v%d, v%d, v%d' % (a + 2, b, b + 1))
            p('v_cvt_pk_bf16_f32 v%d, v%d, v%d' % (a + 3, b + 2, b + 3))
            feed()
    p('L_k2_proj:')
    p('s_mul_i32 s%d, s%d, %d' % (sPO, sRB, 28 * 16384))
    p('s_lshl_b32 s%d, s%d, 10' % (sT0, sH))
    p('s_add_u32 s%d, s%d, s%d' % (sPO, sPO, sT0))
    p('s_add_u32 s%d, s%d, 0x%x' % (sPO, sPO, WS_PO))
    for v in range(4):
        p('v_add_u32 v%d, %d, v%d' % (vVC[v], 2 * PBUF, vVA[v]))
    p('s_waitcnt vmcnt(12)')
    p('s_barrier')
    if STAMP: p(stamp_ops())
    eng = Eng()
    pre = []
    for ps in range(PRE):
        r = eng.reads(0, ps, ps); pre.append([x.tag for x in r]); p(r)
    pend = [t for g_ in pre for t in g_]
    issued = [x.tag for x in pd1 if x.k == 'vmem']
    dmas = {1: pd1}
    cout = proj_epilogue()
    for g in range(7):
        streams = []
        if g + 2 <= 6:
            dmas[g + 2] = proj_dma(g + 2)
            ds_ = Stream('dma', prio=4)
            for i, x in enumerate(dmas[g + 2]): ds_.add(x, e=int(3.4 * i), d=int(3.4 * i) + 8)
            streams.append(ds_)
        if g >= 1:
            cin = Stream('carry', prio=2)
            cin.add(I('s_add_u32 s%d, s%d, %d' % (sOUT, sPO, (g - 1) * 65536)), e=-1, d=40)
            ep = proj_epilogue()
            for (e, x) in ep:
                if x.k != 'vmem': cin.add(x, e=e, d=56)
            for i, (e, x) in enumerate([y for y in ep if y[1].k == 'vmem']): cin.add(x, e=60 + 4 * i, d=76)
            streams.append(cin)
        wt = [x.tag for x in dmas.get(g + 1, []) if x.k == 'vmem']
        seq, pre, pend = proj_segment(eng, g, pre, streams, pend, wt, issued)
        p(seq)
    p('s_add_u32 s%d, s%d, %d' % (sOUT, sPO, 6 * 65536))
    p('s_nop 7')
    p([x for (_, x) in cout])
    if STAMP:
        p('s_waitcnt vmcnt(0) lgkmcnt(0)')
        p(stamp_ops()); p('s_waitcnt lgkmcnt(0)'); p(stamp_ops())
        p('s_memrealtime s[92:93]'); p('s_waitcnt lgkmcnt(0)'); p(stamp_ops()[:3])
    p('s_endpgm')
    def w_prefetch():
        p('s_mul_i32 s%d, s%d, %d' % (sT0, sH, 256 * 896))
        p('s_mul_i32 s%d, s%d, %d' % (sT1, sH, 128 * 896))
        p('buffer_load_dword v%d, v%d, s[%d:%d], s%d offen' % (vDUM, vPFO, SWO, SWO + 3, sT0))
        p('buffer_load_dword v%d, v%d, s[%d:%d], s%d offen' % (vDUM, vPFD, SWD, SWD + 3, sT1))
    p('L_k2_evt:')
    p('s_cmp_eq_u32 s%d, 1' % sROLE)
    p('s_cbranch_scc1 L_k2_evt_c')
    p('s_cmp_eq_u32 s%d, 1' % sPUBP)
    p('s_cbranch_scc0 L_k2_evt_pw')
    p('s_mov_b32 s%d, 0' % sPUBP)
    p('s_cmp_eq_u32 s%d, 0' % sW)
    p('s_cbranch_scc0 L_k2_evt_p1')
    p('v_mov_b32 v%d, 1' % vT[1])
    p('buffer_store_dword v%d, off, s[%d:%d], s%d sc1' % (vT[1], SWS, SWS + 3, sFL))
    p('L_k2_evt_p1:')
    p('s_mov_b32 s%d, 3' % sEVT)
    p('s_cmp_le_u32 s%d, 3' % sCNT)
    p('s_cbranch_scc0 L_k2_evt_back')
    p('L_k2_evt_pw:')
    w_prefetch()
    p('s_mov_b32 s%d, 0xffff' % sEVT)
    p('s_branch L_k2_evt_back')
    p('L_k2_evt_c:')
    p('s_cmp_eq_u32 s%d, 3' % sCNT)
    p('s_cbranch_scc0 L_k2_evt_c2')
    w_prefetch()
    p('s_mov_b32 s%d, 2' % sEVT)
    p('s_branch L_k2_evt_back')
    p('L_k2_evt_c2:')
    p('s_cmp_eq_u32 s%d, 2' % sCNT)
    p('s_cbranch_scc0 L_k2_evt_c1')
    p('buffer_load_dword v%d, off, s[%d:%d], s%d sc1' % (vSTAT, SWS, SWS + 3, sFL))
    p('s_mov_b32 s%d, 1' % sEVT)
    p('s_branch L_k2_evt_back')
    p('L_k2_evt_c1:')
    p('s_mov_b32 s%d, 0x400000' % sT1)
    p('L_k2_poll:')
    p('v_readfirstlane_b32 s%d, v%d' % (sT0, vSTAT))
    p('s_sub_u32 s%d, s%d, 1' % (sT1, sT1))
    p('s_cmp_eq_u32 s%d, 0' % sT1)
    p('s_cbranch_scc1 L_k2_polled')
    p('s_cmp_eq_u32 s%d, 1' % sT0)
    p('s_cbranch_scc1 L_k2_polled')
    p('s_sleep 4')
    p('buffer_load_dword v%d, off, s[%d:%d], s%d sc1' % (vSTAT, SWS, SWS + 3, sFL))
    p('s_waitcnt vmcnt(0)')
    p('s_branch L_k2_poll')
    p('L_k2_polled:')
    p('s_mov_b32 s%d, s%d' % (sT0, sPM))
    for k in range(16):
        p('buffer_load_dwordx4 %s, v%d, s[%d:%d], s%d offen offset:%d sc1' % (ar(PART + 4 * k), vL16, SWS, SWS + 3, sT0, (k % 4) * 1024))
        if k % 4 == 3: p('s_add_u32 s%d, s%d, 4096' % (sT0, sT0))
    p('buffer_load_dwordx4 %s, v%d, s[%d:%d], s%d offen sc1' % (vr(vSTAT), vL16, SWS, SWS + 3, sT0))
    p('s_mov_b32 s%d, 0xffff' % sEVT)
    p('s_branch L_k2_evt_back')
    mask_block(p, 0, 'L_k2_maskp', 'L_k2_maskp_back', True)
    mask_block(p, 0, 'L_k2_mask0', 'L_k2_mask0_back', False)
    mask_block(p, 1, 'L_k2_mask1', 'L_k2_mask1_back', False)
    slow_path(p, 0, 'L_k2_slow0')
    slow_path(p, 1, 'L_k2_slow1')
    p('L_k2_end:')
    p('s_endpgm')
    return p
```

```python
from fw import *
from common import *
NAME = 'k3_reduce_kernel'
GRID = 64 * 28 // 4
VGPR = 80
STAMP = False
SPAN = False
WS_DBG = 0x0c000000 + (2 << 20)
def build():
    p = Prog()
    p('%s:' % NAME)
    p('s_cmp_ge_u32 s2, %d' % GRID)
    p('s_cbranch_scc1 L_k3_end')
    p('s_load_dwordx2 s[4:5], s[0:1], %d' % KA['ws'])
    p('s_load_dwordx2 s[6:7], s[0:1], %d' % KA['out'])
    p('v_lshrrev_b32 v1, 6, v0')
    p('v_and_b32 v2, 63, v0')
    p('v_readfirstlane_b32 s3, v1')
    p('s_lshl_b32 s16, s2, 2')
    p('s_add_u32 s16, s16, s3')
    p('v_lshlrev_b32 v3, 4, v2')
    p('s_lshl_b32 s17, s16, 14')
    p('s_add_u32 s17, s17, 0x%x' % WS_PO)
    p('s_waitcnt lgkmcnt(0)')
    p('s_mov_b32 s8, s4'); p('s_and_b32 s9, s5, 0xffff'); p('s_mov_b32 s10, 0x%x' % SZ['ws']); p('s_mov_b32 s11, 0x20000')
    p('s_mov_b32 s12, s6'); p('s_and_b32 s13, s7, 0xffff'); p('s_mov_b32 s14, 0x%x' % SZ['out']); p('s_mov_b32 s15, 0x20000')
    if STAMP:
        p('s_memrealtime s[24:25]')
        p('s_lshl_b32 s26, s16, 4')
        p('s_add_u32 s26, s26, 0x%x' % WS_DBG)
        p('s_waitcnt lgkmcnt(0)')
    for h in range(16):
        p('buffer_load_dwordx4 v[%d:%d], v3, s[8:11], s17 offen offset:%d' % (16 + 4 * h, 19 + 4 * h, (h % 4) * 1024))
        if h % 4 == 3 and h < 15: p('s_add_u32 s17, s17, 4096')
    p('s_mul_i32 s18, s16, 2341')
    p('s_lshr_b32 s18, s18, 16')
    p('s_mul_i32 s19, s18, 28')
    p('s_sub_u32 s19, s16, s19')
    p('s_and_b32 s20, s19, 1')
    p('s_lshr_b32 s21, s19, 1')
    p('s_lshl_b32 s22, s18, 5')
    p('s_lshl_b32 s20, s20, 4')
    p('s_add_u32 s22, s22, s20')
    p('s_mul_i32 s22, s22, 896')
    p('s_lshl_b32 s21, s21, 6')
    p('s_add_u32 s22, s22, s21')
    p('v_and_b32 v4, 15, v2')
    p('v_mul_u32_u24 v4, 896, v4')
    p('v_lshrrev_b32 v5, 4, v2')
    p('v_lshl_add_u32 v4, v5, 3, v4')
    for h in range(16):
        p('s_waitcnt vmcnt(%d)' % (15 - h))
        for k in range(4):
            src = 16 + 4 * h + k
            if h == 0:
                p('v_lshlrev_b32 v%d, 16, v%d' % (8 + 2 * k, src))
                p('v_and_b32 v%d, 0xffff0000, v%d' % (9 + 2 * k, src))
            else:
                p('v_lshlrev_b32 v6, 16, v%d' % src)
                p('v_and_b32 v7, 0xffff0000, v%d' % src)
                p('v_add_f32 v%d, v%d, v6' % (8 + 2 * k, 8 + 2 * k))
                p('v_add_f32 v%d, v%d, v7' % (9 + 2 * k, 9 + 2 * k))
    for k in range(4): p('v_cvt_pk_bf16_f32 v%d, v%d, v%d' % (16 + k, 8 + 2 * k, 9 + 2 * k))
    p('buffer_store_dwordx2 v[16:17], v4, s[12:15], s22 offen')
    p('buffer_store_dwordx2 v[18:19], v4, s[12:15], s22 offen offset:32')
    if SPAN:
        p('s_waitcnt vmcnt(0)')
        p('s_memrealtime s[28:29]')
        p('s_lshl_b32 s26, s16, 2')
        p('s_add_u32 s26, s26, 0x%x' % (0x0c000000 + (3 << 20) + 4096))
        p('s_waitcnt lgkmcnt(0)')
        p('v_mov_b32 v20, s28')
        p('buffer_store_dword v20, off, s[8:11], s26')
    if STAMP:
        p('s_waitcnt vmcnt(0)')
        p('s_memrealtime s[28:29]')
        p('s_waitcnt lgkmcnt(0)')
        p('v_mov_b32 v20, s24')
        p('v_mov_b32 v21, s28')
        p('buffer_store_dwordx2 v[20:21], off, s[8:11], s26')
    p('L_k3_end:')
    p('s_endpgm')
    return p
```

```python
import sys, importlib
from fw import *
HEAD = open('gated_mix__compressed_kv_cla__geglu_ffn__prompt.s.ref').read().split('; Override launch')[0]

def desc(name, vgpr, accum, sgpr=102):
    return """.amdhsa_kernel %s
  .amdhsa_next_free_vgpr %d
  .amdhsa_next_free_sgpr %d
  .amdhsa_accum_offset %d
  .amdhsa_group_segment_fixed_size 0
  .amdhsa_kernarg_size 112
  .amdhsa_user_sgpr_count 2
  .amdhsa_user_sgpr_kernarg_segment_ptr 1
  .amdhsa_system_sgpr_workgroup_id_x 1
.end_amdhsa_kernel
""" % (name, vgpr, sgpr, accum)

def make(kernels, path):
    out = HEAD
    for (name, p, grid, block, lds, vgpr, accum) in kernels:
        out += '; @launch kernel=%s grid=(%d,1,1) block=(%d,1,1) lds=%d\n' % (name, grid, block, lds)
    out += '.amdgcn_target "amdgcn-amd-amdhsa--gfx950"\n.text\n'
    nerr = 0
    for (name, p, *_r) in kernels:
        p.seq = fix_m0(p.seq)
        errs = lint(p.seq, name)
        for e in errs[:20]: print(e)
        nerr += len(errs)
        out += '.globl %s\n.p2align 8\n.type %s,@function\n' % (name, name)
        out += p.text()
    out += '.section .rodata,"a"\n'
    for (name, p, grid, block, lds, vgpr, accum) in kernels:
        out += '.p2align 6\n' + desc(name, vgpr, accum)
    open(path, 'w').write(out)
    print('%s: %d bytes, %d instructions, %d lint errors' % (path, len(out), sum(len(k[1].seq) for k in kernels), nerr))
    return nerr

if __name__ == '__main__':
    which = sys.argv[1].split(',')
    path = sys.argv[2]
    ks = []
    import os
    opts = dict(kv.split('=') for kv in os.environ.get('OPTS', '').split(',') if kv)
    stamp = len(sys.argv) > 3 and sys.argv[3] == 'stamp'
    if 'k1' in which:
        import k1
        k1.STAMP = stamp
        k1.CODE_PF = opts.get('codepf', '0') == '1'
        k1.SPAN = opts.get('span', '0') == '1'
        k1.BULK_FIRST = opts.get('bulkfirst', '0') == '1'
        k1.END_PF = opts.get('endpf', k1.END_PF)
        k1.VM_GAP = float(opts.get('vmgap', k1.VM_GAP))
        k1.C_READ_AT = float(opts.get('cread', k1.C_READ_AT))
        k1.ST_FLAGS = opts.get('st1', '_sc1').replace('_', ' ')
        k1.MAPB = opts.get('mapb', '0') == '1'
        if len(sys.argv) > 4: k1.ABL = set(sys.argv[4].split(','))
        ks.append((k1.NAME, k1.build(), 256, 256, 163840, 512, 256))
    if 'k2' in which:
        import k2
        k2.STAMP = stamp
        k2.SPLIT = int(opts.get('split', k2.SPLIT))
        k2.ABL = set(opts.get('abl2', '').split('+'))
        k2.ATT_STEP = float(opts.get('astep', k2.ATT_STEP))
        k2.ST_FLAGS = opts.get('st2', '_sc1').replace('_', ' ')
        ks.append((k2.NAME, k2.build(), 256, 256, 163840, 512, 256))
    if 'k3' in which:
        import k3
        k3.STAMP = stamp
        k3.SPAN = opts.get('span', '0') == '1'
        ks.append((k3.NAME, k3.build(), k3.GRID, 256, 0, k3.VGPR, k3.VGPR))
    make(ks, path)
```
